```python
import torch

def _softmax(x, axis=-1):
    return torch.softmax(x, dim=axis)

def _gelu(x):
    return torch.nn.functional.gelu(x, approximate='tanh')

def _silu(x):
    return torch.nn.functional.silu(x)

def _sigmoid(x):
    return torch.sigmoid(x)

def _layernorm(x, axis=-1, eps=1e-05):
    m = x.mean(dim=axis, keepdim=True)
    v = x.var(dim=axis, keepdim=True, unbiased=False)
    return (x - m) / torch.sqrt(v + eps)

def _scatter_add(tgt, idx, src, axis=0):
    return tgt.clone().index_add_(axis, idx, src)

def _segment_sum(src, seg, n):
    out = torch.zeros((n,) + src.shape[1:], dtype=src.dtype)
    return out.index_add_(0, seg, src)

def _pad(x, pw):
    flat = tuple((v for pair in reversed(pw) for v in pair))
    return torch.nn.functional.pad(x, flat)
kernel_name = 'adaLN_cond__ssm_conv_h3__glu_gated_swiglu__prompt'

def setup_inputs():

    _w = lambda a: (lambda t: t.to(torch.bfloat16) if t.is_floating_point() else t)(torch.as_tensor(a))

    def _A_setup():
        B, S, D = (1, 2048, 1024)
        ks = 4
        return {'q': _w((lambda *s: torch.randn(*s, dtype=torch.bfloat16) * 0.05)(B, S, D)), 'k': _w((lambda *s: torch.randn(*s, dtype=torch.bfloat16) * 0.8)(B, S, D)), 'v': _w((lambda *s: torch.randn(*s, dtype=torch.bfloat16) * 0.8)(B, S, D)), 'shift_k': _w((lambda *s: torch.randn(*s, dtype=torch.bfloat16) * 0.8)(D, ks) * 0.5), 'ssm_k': _w((lambda *s: torch.randn(*s, dtype=torch.bfloat16) * 0.8)(D, S) * (1.0 / S ** 0.5)), 'ssm_D': _w((lambda *s: torch.randn(*s, dtype=torch.bfloat16) * 0.8)(D))}
    _A_in = _A_setup()

    def _B_setup():
        B, S, D, F = (1, 2048, 1024, 3584)
        return {'x': _w((lambda *s: torch.randn(*s, dtype=torch.bfloat16) * 0.05)(B, S, D)), 'w1': _w((lambda *s: torch.randn(*s, dtype=torch.bfloat16) * 0.8)(D, F) * (2.0 / D) ** 0.5), 'w3': _w((lambda *s: torch.randn(*s, dtype=torch.bfloat16) * 0.8)(D, F) * (2.0 / D) ** 0.5), 'w2': _w((lambda *s: torch.randn(*s, dtype=torch.bfloat16) * 0.8)(F, D) * (2.0 / F) ** 0.5)}
    _B_in = _B_setup()
    return {'A_q': _A_in['q'], 'A_k': _A_in['k'], 'A_v': _A_in['v'], 'A_shift_k': _A_in['shift_k'], 'A_ssm_k': _A_in['ssm_k'], 'A_ssm_D': _A_in['ssm_D'], 'B_x': _B_in['x'], 'B_w1': _B_in['w1'], 'B_w3': _B_in['w3'], 'B_w2': _B_in['w2'], 'c': _w((lambda *s: torch.randn(*s, dtype=torch.bfloat16) * 0.2)(1, 1024) * 8.0), 'w_mod': _w((lambda *s: torch.randn(*s, dtype=torch.bfloat16) * 0.2)(1024, 6 * 1024) * 1024 ** (-0.5) * 8.0)}

def reference(A_q, A_k, A_v, A_shift_k, A_ssm_k, A_ssm_D, B_x, B_w1, B_w3, B_w2, c, w_mod):

    def _A_ref(q, k, v, shift_k, ssm_k, ssm_D):
        B, S, D = q.shape
        ks = shift_k.shape[-1]
        k_pad = _pad(k, ((0, 0), (ks - 1, 0), (0, 0)))
        k_shift = torch.zeros_like(k)
        for t in range(ks):
            k_shift = k_shift + k_pad[:, t:t + S, :] * shift_k[:, ks - 1 - t][None, None, :]
        kv = k_shift * v
        L = 2 * S
        kv_pad = _pad(kv, ((0, 0), (0, S), (0, 0)))
        kf_pad = _pad(ssm_k, ((0, 0), (0, S)))
        kv_f = (lambda x, axes=(-2, -1): torch.fft.rfft2(x.float(), dim=axes))(kv_pad[:, None, :, :], axes=(1, 2))
        kf_f = (lambda x, axes=(-2, -1): torch.fft.rfft2(x.float(), dim=axes))(kf_pad[:, None, :], axes=(1, 2))
        kf_f = (lambda x, *d: x.permute(*d))(kf_f, 1, 2, 0)
        y_f = kv_f * kf_f[None, :, :, :]
        y = (lambda x, s, axes=(-2, -1): torch.fft.irfft2(x, s=s, dim=axes).to(torch.bfloat16))(y_f, (1, L), axes=(1, 2))[:, 0, :S, :]
        y = y + kv * ssm_D[None, None, :]
        return q * y

    def _B_ref(x, w1, w3, w2):
        gate = torch.einsum('bsd,df->bsf', x, w1)
        up = torch.einsum('bsd,df->bsf', x, w3)
        h = _silu(gate) * up
        out = torch.einsum('bsf,fd->bsd', h, w2)
        return out
    x = A_q
    mod = (_silu(c) @ w_mod).reshape(c.shape[0], 6, 1, -1)
    sa, ca, ga, sb, cb, gb = (mod[:, 0].clone(), mod[:, 1].clone(), mod[:, 2].clone(), mod[:, 3].clone(), mod[:, 4].clone(), mod[:, 5].clone())
    h = _layernorm(x, axis=-1) * (1 + ca) + sa
    x = x + ga * _A_ref(h, A_k, A_v, A_shift_k, A_ssm_k, A_ssm_D)
    h = _layernorm(x, axis=-1) * (1 + cb) + sb
    x = x + gb * _B_ref(h, B_w1, B_w3, B_w2)
    return x
```

```python
class Asm:
    def __init__(self):
        self.lines = []
    def __call__(self, s):
        for l in s.split("\n"):
            l = l.strip()
            if l:
                self.lines.append(("" if l.endswith(":") or l.startswith(".") else "    ") + l)
    def text(self):
        return "\n".join(self.lines) + "\n"

def vr(b, n=4):
    return "v[%d:%d]" % (b, b + n - 1) if n > 1 else "v%d" % b
def sr(b, n=4):
    return "s[%d:%d]" % (b, b + n - 1) if n > 1 else "s%d" % b

def kernel_head(A, name):
    A(".text")
    A(".globl %s" % name)
    A(".p2align 8")
    A(".type %s,@function" % name)
    A("%s:" % name)

def kernel_desc(A, name, vgpr, sgpr=102):
    acc = (vgpr + 3) // 4 * 4
    A('.section .rodata,"a"')
    A(".p2align 6")
    A(".amdhsa_kernel %s" % name)
    A(".amdhsa_next_free_vgpr %d" % vgpr)
    A(".amdhsa_next_free_sgpr %d" % sgpr)
    A(".amdhsa_accum_offset %d" % acc)
    A(".amdhsa_group_segment_fixed_size 0")
    A(".amdhsa_kernarg_size 120")
    A(".amdhsa_user_sgpr_count 2")
    A(".amdhsa_user_sgpr_kernarg_segment_ptr 1")
    A(".amdhsa_system_sgpr_workgroup_id_x 1")
    A(".end_amdhsa_kernel")

def make_srd(A, d, blo, bhi, off, nbytes):
    if off:
        A("s_add_u32 s%d, s%d, 0x%x" % (d, blo, off))
        A("s_addc_u32 s%d, s%d, 0" % (d + 1, bhi))
    else:
        A("s_mov_b32 s%d, s%d" % (d, blo))
        A("s_mov_b32 s%d, s%d" % (d + 1, bhi))
    A("s_mov_b32 s%d, 0x%x" % (d + 2, nbytes))
    A("s_mov_b32 s%d, 0x00020000" % (d + 3))

WS_MOD = 0
WS_FLAG = 0x10000
WS_YT = 1 << 20
WS_X1 = 8 << 20
WS_H2 = 12 << 20
WS_HH = 16 << 20
WS_PART = 32 << 20
WS_URT = 48 << 20

def rnd2(A, a, b, t):
    A("v_cvt_pk_bf16_f32 v%d, v%d, v%d" % (t, a, b))
    A("v_lshlrev_b32 v%d, 16, v%d" % (a, t))
    A("v_and_b32 v%d, 0xffff0000, v%d" % (b, t))

def unpack2(A, lo, hi, src):
    A("v_lshlrev_b32 v%d, 16, v%d" % (lo, src))
    A("v_and_b32 v%d, 0xffff0000, v%d" % (hi, src))
```

```python
from asmlib import *
import os
EXP = os.environ.get("EXP", "")
GRID = 256
HSTR = 4160
HCH = 4*HSTR
UR0 = 0
URS = 4608
SC0 = UR0 + 4*URS
RED0 = SC0 + 4096
H0 = RED0 + 2048
LDS = H0 + 4*HCH
VGPR = 256
LOG2E_NEG = "0xbfb8aa3b"

def gen_conv(A, name="conv_kernel"):
    kernel_head(A, name)
    L = "Lcv_"
    A("s_cmp_ge_u32 s2, 256")
    A("s_cbranch_scc1 %send" % L)
    if "ts" in EXP: A("s_memtime s[60:61]\ns_memrealtime s[80:81]\ns_load_dwordx2 s[70:71], s[0:1], 104")
    A("s_load_dwordx4 s[28:31], s[0:1], 32")
    A("s_load_dwordx4 s[36:39], s[0:1], 80")
    A("s_load_dwordx2 s[34:35], s[0:1], 112")
    A("v_lshrrev_b32 v1, 6, v0")
    A("v_and_b32 v2, 63, v0")
    A("v_readfirstlane_b32 s18, v1")
    A("s_and_b32 s16, s2, 7\ns_lshl_b32 s16, s16, 5\ns_lshr_b32 s17, s2, 3\ns_add_u32 s16, s16, s17")
    A("s_lshl_b32 s17, s16, 2\ns_add_u32 s17, s17, s18")
    A("v_lshlrev_b32 v3, 4, v2\nv_subrev_u32 v8, 32, v3\nv_subrev_u32 v9, 16, v3\nv_add_u32 v5, %d, v3" % (62*16))
    A("s_waitcnt lgkmcnt(0)")
    A("s_lshl_b32 s19, s16, 3\ns_add_u32 s30, s30, s19\ns_addc_u32 s31, s31, 0")
    A("s_load_dwordx2 s[48:49], s[30:31], 0")
    A("s_lshl_b32 s19, s17, 12\ns_add_u32 s12, s28, s19\ns_addc_u32 s13, s29, 0\ns_movk_i32 s14, 4096\ns_mov_b32 s15, 0x00020000")
    make_srd(A, 4, 34, 35, WS_URT, 1024*2048*2)
    make_srd(A, 20, 38, 39, 0, 1024*6144*2)
    make_srd(A, 52, 36, 37, 0, 2048)
    HS = 104
    for it in range(5):
        if it == 0:
            A("buffer_load_dwordx4 %s, v8, s[12:15], 0 offen" % vr(HS))
            A("buffer_load_dwordx2 %s, v9, s[12:15], 0 offen" % vr(HS+4, 2))
        else:
            A("buffer_load_dwordx4 %s, v5, s[12:15], 0 offen offset:%d" % (vr(HS+8*it), (it-1)*1024))
            A("buffer_load_dwordx2 %s, v5, s[12:15], 0 offen offset:%d" % (vr(HS+8*it+4, 2), (it-1)*1024+16))
    A("s_mul_i32 s50, s18, %d" % URS)
    for i in range(4):
        A("s_add_u32 m0, s50, %d" % (UR0 + i*1024))
        A("s_add_u32 s40, s19, %d" % (i*1024))
        A("buffer_load_dwordx4 v3, s[4:7], s40 offen lds")
    A("v_lshlrev_b32 v4, 3, v0")
    A("buffer_load_dwordx2 v[144:145], v4, s[52:55], 0 offen")
    WR = 192
    A("v_lshrrev_b32 v7, 2, v0\ns_movk_i32 s19, 12288\nv_mul_lo_u32 v7, v7, s19")
    A("v_and_b32 v8, 3, v0\nv_mul_u32_u24 v8, 12, v8\nv_add_u32 v7, v7, v8")
    A("s_mul_i32 s19, s16, 48")
    for i in range(16):
        A("s_add_u32 s50, s19, %d" % (i*64*12288))
        A("buffer_load_dwordx3 %s, v7, s[20:23], s50 offen" % vr(WR+4*i, 3))
    A("s_waitcnt lgkmcnt(0)")
    A("s_cmp_lt_u32 s18, 2\ns_cselect_b32 s51, s48, s49\ns_lshl_b32 s57, s51, 16\ns_and_b32 s51, s51, 0xffff0000\ns_bitcmp1_b32 s18, 0\ns_cselect_b32 s51, s51, s57")
    A("v_mov_b32 v12, 0\nv_mov_b32 v13, 0\nv_mov_b32 v14, 0\nv_mov_b32 v15, 0")
    A("s_mul_i32 s19, s18, %d\ns_add_u32 s19, s19, %d" % (URS, UR0 + 4096))
    A("v_add_u32 v11, s19, v3")
    A("v_cmp_gt_u32 vcc, 32, v2\ns_and_saveexec_b64 s[58:59], vcc")
    A("ds_write_b128 v11, v[12:15]")
    A("s_mov_b64 exec, s[58:59]")
    A("s_mul_i32 s19, s18, %d\ns_add_u32 s19, s19, %d" % (HCH, H0))
    A("v_add_u32 v9, s19, v3")
    for it in range(5):
        A("s_waitcnt vmcnt(%d)" % (31 - 2*(it+1)))
        d = HS + 8*it
        if it == 4:
            A("v_cmp_gt_u32 vcc, 4, v2\ns_and_saveexec_b64 s[58:59], vcc")
        off = it*1024
        A("ds_write_b128 v9, %s offset:%d" % (vr(d), off))
        for q in range(4): A("v_alignbit_b32 v%d, v%d, v%d, 16" % (12+q, d+q+1, d+q))
        A("ds_write_b128 v9, v[12:15] offset:%d" % (off + HSTR))
        for q in range(4): A("v_mov_b32 v%d, v%d" % (16+q, d+q+1))
        A("ds_write_b128 v9, v[16:19] offset:%d" % (off + 2*HSTR))
        for q in range(4): A("v_alignbit_b32 v%d, v%d, v%d, 16" % (20+q, d+q+2, d+q+1))
        A("ds_write_b128 v9, v[20:23] offset:%d" % (off + 3*HSTR))
        if it == 4:
            A("s_mov_b64 exec, s[58:59]")
    A("s_waitcnt vmcnt(16)")
    A("v_lshlrev_b32 v12, 16, v144\nv_and_b32 v13, 0xffff0000, v144\nv_lshlrev_b32 v14, 16, v145\nv_and_b32 v15, 0xffff0000, v145")
    for q in range(4): A("v_mul_f32 v%d, %s, v%d" % (16+q, LOG2E_NEG, 12+q))
    for q in range(4): A("v_exp_f32 v%d, v%d" % (16+q, 16+q))
    for q in range(4): A("v_add_f32 v%d, 1.0, v%d" % (16+q, 16+q))
    for q in range(4): A("v_rcp_f32 v%d, v%d" % (16+q, 16+q))
    A("s_nop 0")
    for q in range(4): A("v_mul_f32 v%d, v%d, v%d" % (12+q, 12+q, 16+q))
    rnd2(A, 12, 13, 16); rnd2(A, 14, 15, 17)
    A("v_lshlrev_b32 v10, 4, v0")
    A("ds_write_b128 v10, v[12:15] offset:%d" % SC0)
    if "ts" in EXP: A("s_memtime s[62:63]")
    A("v_and_b32 v10, 15, v2\nv_lshrrev_b32 v11, 4, v2")
    A("v_add_u32 v12, 1, v10\nv_and_b32 v13, 3, v12\nv_lshrrev_b32 v12, 2, v12")
    A("v_mul_u32_u24 v13, %d, v13\nv_lshl_add_u32 v13, v12, 3, v13\nv_lshl_add_u32 v13, v11, 4, v13" % HSTR)
    A("s_mul_i32 s19, s18, %d\ns_add_u32 s19, s19, %d" % (HCH, H0))
    A("v_add_u32 v3, s19, v13")
    A("v_lshlrev_b32 v12, 5, v10\nv_lshlrev_b32 v13, 4, v11\nv_sub_u32 v12, v13, v12")
    A("s_mul_i32 s19, s18, %d\ns_add_u32 s19, s19, %d" % (URS, UR0 + 4064 - 512*7))
    A("v_add_u32 v4, s19, v12")
    ACC = 160
    FA = [32, 96]; FB = [64, 128]
    def rd(r, s):
        ops = []
        for p in range(8):
            ops.append("ds_read_b64 %s, v3 offset:%d" % (vr(FA[s]+4*p, 2), 512*p + 64*r))
            ops.append("ds_read_b64 %s, v3 offset:%d" % (vr(FA[s]+4*p+2, 2), 512*p + 64*r + 8))
            ops.append("ds_read_b128 %s, v4 offset:%d" % (vr(FB[s]+4*p), 512*(7-p) + 64*r))
        return ops
    for i in range(32): A("v_mov_b32 v%d, 0" % (ACC+i))
    A("s_waitcnt lgkmcnt(0)")
    for x in rd(0, 0): A(x)
    for r in range(8):
        s = r & 1
        A("s_waitcnt lgkmcnt(0)")
        nxt = rd(r+1, s ^ 1) if r < 7 else []
        k = 0
        for t in range(8):
            for p in range(t+1):
                q = t - p
                A("v_mfma_f32_16x16x32_bf16 %s, %s, %s, %s" % (vr(ACC+4*t), vr(FA[s]+4*p), vr(FB[s]+4*q), vr(ACC+4*t)))
                if k < len(nxt): A(nxt[k]); k += 1
    if "ts" in EXP: A("s_memtime s[64:65]")
    A("v_lshlrev_b32 v12, 5, v10\nv_lshl_add_u32 v12, v11, 3, v12")
    A("s_mul_i32 s19, s18, %d\ns_add_u32 s19, s19, %d" % (URS, UR0 + 4088 - 512*7))
    A("v_sub_u32 v13, s19, v12")
    for t in range(8):
        A("ds_read_b64 %s, v13 offset:%d" % (vr(32+2*t, 2), 512*(7-t)))
    make_srd(A, 4, 34, 35, WS_YT, 1024*2048*2)
    A("s_lshl_b32 s19, s17, 12")
    A("s_waitcnt lgkmcnt(0)")
    for t in range(8):
        a = ACC + 4*t
        u = 32 + 2*t
        rnd2(A, a, a+1, 16); rnd2(A, a+2, a+3, 17)
        A("v_and_b32 v20, 0xffff0000, v%d\nv_lshlrev_b32 v21, 16, v%d\nv_and_b32 v22, 0xffff0000, v%d\nv_lshlrev_b32 v23, 16, v%d" % (u+1, u+1, u, u))
        for q in range(4): A("v_mul_f32 v%d, s51, v%d" % (20+q, 20+q))
        rnd2(A, 20, 21, 16); rnd2(A, 22, 23, 17)
        for q in range(4): A("v_add_f32 v%d, v%d, v%d" % (a+q, a+q, 20+q))
        A("v_cvt_pk_bf16_f32 v%d, v%d, v%d" % (u, a, a+1))
        A("v_cvt_pk_bf16_f32 v%d, v%d, v%d" % (u+1, a+2, a+3))
        A("buffer_store_dwordx2 %s, v12, s[4:7], s19 offen offset:%d" % (vr(u, 2), 512*t))
    A("s_barrier")
    A("v_lshrrev_b32 v10, 2, v0\nv_lshlrev_b32 v10, 2, v10")
    for i in range(16):
        A("ds_read_b32 v%d, v10 offset:%d" % (60+i, SC0 + i*256))
    for q in range(6): A("v_mov_b32 v%d, 0" % (80+q))
    A("s_waitcnt vmcnt(8) lgkmcnt(0)")
    for i in range(16):
        w = WR + 4*i
        for q in range(3):
            A("v_lshlrev_b32 v12, 16, v%d\nv_and_b32 v13, 0xffff0000, v%d" % (w+q, w+q))
            A("v_fmac_f32 v%d, v%d, v12\nv_fmac_f32 v%d, v%d, v13" % (80+2*q, 60+i, 81+2*q, 60+i))
    for q in range(6):
        A("s_nop 1")
        A("v_add_f32_dpp v%d, v%d, v%d row_ror:4 row_mask:0xf bank_mask:0xf" % (80+q, 80+q, 80+q))
    for q in range(6):
        A("s_nop 1")
        A("v_add_f32_dpp v%d, v%d, v%d row_ror:8 row_mask:0xf bank_mask:0xf" % (80+q, 80+q, 80+q))
    A("v_lshrrev_b32 v10, 4, v0\nv_mul_u32_u24 v10, 96, v10\nv_and_b32 v11, 3, v0\nv_mul_u32_u24 v11, 24, v11\nv_add_u32 v10, v10, v11")
    A("v_and_b32 v11, 15, v0\nv_cmp_gt_u32 vcc, 4, v11\ns_and_saveexec_b64 s[58:59], vcc")
    A("ds_write_b64 v10, v[80:81] offset:%d\nds_write_b64 v10, v[82:83] offset:%d\nds_write_b64 v10, v[84:85] offset:%d" % (RED0, RED0+8, RED0+16))
    A("s_mov_b64 exec, s[58:59]")
    A("s_waitcnt lgkmcnt(0)")
    A("s_barrier")
    A("s_cmp_eq_u32 s18, 0")
    A("s_cbranch_scc0 %snomod" % L)
    A("v_lshlrev_b32 v10, 2, v2")
    for i in range(16):
        A("ds_read_b32 v%d, v10 offset:%d" % (60+i, RED0 + i*96))
    A("s_waitcnt lgkmcnt(0)")
    for i in range(1, 16): A("v_add_f32 v60, v60, v%d" % (60+i))
    rnd2(A, 60, 61, 16)
    make_srd(A, 20, 34, 35, WS_MOD, 6144*4)
    A("s_mul_i32 s19, s16, 96")
    A("v_cmp_gt_u32 vcc, 24, v2\ns_and_saveexec_b64 s[58:59], vcc")
    A("buffer_store_dword v60, v10, s[20:23], s19 offen")
    A("s_mov_b64 exec, s[58:59]")
    A("%snomod:" % L)
    if "ts" in EXP:
        A("s_waitcnt vmcnt(0)")
        A("s_memtime s[68:69]")
        A("s_memrealtime s[82:83]")
        A("s_waitcnt lgkmcnt(0)")
        A("s_sub_u32 s66, s82, s80")
        A("s_sub_u32 s62, s62, s60\ns_sub_u32 s64, s64, s60\ns_sub_u32 s68, s68, s60")
        A("s_mov_b32 s72, s70\ns_mov_b32 s73, s71\ns_mov_b32 s74, 256\ns_mov_b32 s75, 0x00020000")
        A("v_mov_b32 v40, s62\nv_mov_b32 v41, s64\nv_mov_b32 v42, s66\nv_mov_b32 v43, s68")
        A("s_lshr_b32 s21, s2, 7\ns_lshl_b32 s21, s21, 2\ns_add_u32 s21, s21, s18\ns_lshl_b32 s21, s21, 4\nv_mov_b32 v44, s21")
        A("s_and_b32 s22, s2, 127\ns_cmp_eq_u32 s22, 5\ns_cbranch_scc0 %send" % L)
        A("v_cmp_eq_u32 vcc, 0, v2\ns_and_saveexec_b64 s[76:77], vcc")
        A("buffer_store_dwordx4 v[40:43], v44, s[72:75], 0 offen")
    A("%send:" % L)
    A("s_endpgm")
    return name
```

```python
from asmlib import *
import os
EXP = os.environ.get("EXP", "")
LOG2E_NEG = "0xbfb8aa3b"
LDS = 163840
VGPR = 240

def emit_swiglu(A, g, u, out, t):
    A("v_pk_mul_f32 %s, %s, s[40:41]" % (vr(t, 2), vr(g, 2)))
    A("v_pk_mul_f32 %s, %s, s[40:41]" % (vr(t+2, 2), vr(g+2, 2)))
    for i in range(4):
        A("v_exp_f32 v%d, v%d" % (t+i, t+i))
    A("v_pk_mul_f32 %s, %s, %s" % (vr(g, 2), vr(g, 2), vr(u, 2)))
    A("v_pk_mul_f32 %s, %s, %s" % (vr(g+2, 2), vr(g+2, 2), vr(u+2, 2)))
    A("v_pk_add_f32 %s, %s, s[42:43]" % (vr(t, 2), vr(t, 2)))
    A("v_pk_add_f32 %s, %s, s[42:43]" % (vr(t+2, 2), vr(t+2, 2)))
    for i in range(4):
        A("v_rcp_f32 v%d, v%d" % (t+i, t+i))
    A("s_nop 0")
    A("v_pk_mul_f32 %s, %s, %s" % (vr(g, 2), vr(g, 2), vr(t, 2)))
    A("v_pk_mul_f32 %s, %s, %s" % (vr(g+2, 2), vr(g+2, 2), vr(t+2, 2)))
    A("v_cvt_pk_bf16_f32 v%d, v%d, v%d" % (out, g, g+1))
    A("v_cvt_pk_bf16_f32 v%d, v%d, v%d" % (out+1, g+2, g+3))

def gen_gemm1(A, name="gemm1_kernel"):
    kernel_head(A, name)
    L = "Lg1_"
    A("s_cmp_ge_u32 s2, 256")
    A("s_cbranch_scc1 %send" % L)
    if "ts" in EXP: A("s_memtime s[60:61]\ns_memrealtime s[80:81]\ns_load_dwordx2 s[70:71], s[0:1], 104")
    A("s_load_dwordx4 s[24:27], s[0:1], 56")
    A("s_load_dwordx2 s[28:29], s[0:1], 112")
    A("v_lshrrev_b32 v1, 6, v0")
    A("v_and_b32 v2, 63, v0")
    A("v_readfirstlane_b32 s18, v1")
    A("s_and_b32 s16, s2, 7\ns_lshl_b32 s16, s16, 2\ns_lshr_b32 s17, s2, 3\ns_and_b32 s17, s17, 3\ns_add_u32 s16, s16, s17")
    A("s_lshr_b32 s17, s2, 5")
    A("s_and_b32 s19, s18, 3")
    A("s_lshr_b32 s20, s18, 2")
    A("v_lshrrev_b32 v20, 4, v2")
    A("v_and_b32 v21, 15, v2")
    A("v_lshrrev_b32 v22, 3, v2")
    A("v_and_b32 v23, 7, v2")
    A("v_xor_b32 v24, v23, v20\nv_lshlrev_b32 v24, 4, v24\nv_lshl_add_u32 v4, v22, 11, v24")
    A("v_xor_b32 v5, 64, v4")
    A("v_lshrrev_b32 v24, 1, v21\nv_and_b32 v25, 1, v21")
    A("s_movk_i32 s21, 7168")
    A("v_mul_lo_u32 v26, v20, s21")
    A("v_lshl_add_u32 v26, v25, 4, v26")
    A("v_mov_b32 v28, 0x80000000")
    for (dst, fx) in ((6, 0), (7, 4)):
        A("v_xor_b32 v27, v24, v20")
        if fx: A("v_xor_b32 v27, %d, v27" % fx)
        A("v_cmp_ne_u32 vcc, 7, v27")
        A("v_lshl_add_u32 v27, v27, 5, v26")
        A("s_nop 1")
        A("v_cndmask_b32 v%d, v28, v27, vcc" % dst)
    A("s_lshl_b32 s30, s17, 19\ns_lshl_b32 s21, s18, 16\ns_add_u32 s30, s30, s21")
    A("s_mul_i32 s31, s16, 224\ns_mul_i32 s21, s19, %d\ns_add_u32 s31, s31, s21" % (16*7168))
    A("s_lshl_b32 s33, s18, 12")
    A("s_add_u32 s32, s33, 65536")
    A("s_add_u32 s36, s33, %d" % (65536 + 98304))
    A("s_waitcnt lgkmcnt(0)")
    if "ts2" in EXP: A("s_memtime s[84:85]")
    make_srd(A, 4, 28, 29, WS_H2, 2048*1024*2)
    A("s_cmp_eq_u32 s20, 0")
    A("s_cselect_b32 s8, s24, s26")
    A("s_cselect_b32 s9, s25, s27")
    A("s_mov_b32 s10, %d" % (1024*3584*2))
    A("s_mov_b32 s11, 0x00020000")

    def dmaA_ops():
        ops = []
        for ii in range(4):
            ops.append(["s_add_u32 m0, s32, %d" % (ii*1024),
                        "s_add_u32 s34, s30, %d" % (ii*8*2048),
                        "buffer_load_dwordx4 v%d, s[4:7], s34 offen lds" % (4 + (ii & 1))])
        ops[-1] = ops[-1] + ["s_add_u32 s30, s30, 128", "s_add_u32 s32, s32, 32768", "s_cmp_ge_u32 s32, s36",
                             "s_cselect_b32 s37, 98304, 0", "s_sub_u32 s32, s32, s37"]
        return ops
    def dmaB_ops(buf):
        ops = []
        for jj in range(4):
            ops.append(["s_add_u32 m0, s33, %d" % (buf*32768 + jj*1024),
                        "s_add_u32 s34, s31, %d" % (jj*4*7168),
                        "buffer_load_dwordx4 v%d, s[8:11], s34 offen lds" % (6 + (jj >> 1))])
        ops[-1] = ops[-1] + ["s_add_u32 s31, s31, %d" % (64*7168)]
        return ops
    def emit(groups):
        for g in groups:
            for x in g: A(x)
    emit(dmaB_ops(0)); emit(dmaA_ops())
    A("s_barrier")
    emit(dmaB_ops(1)); emit(dmaA_ops())

    if "ts2" in EXP: A("s_memtime s[86:87]\ns_waitcnt vmcnt(19)\ns_memtime s[88:89]\ns_waitcnt vmcnt(16)\ns_memtime s[90:91]")
    make_srd(A, 12, 28, 29, WS_HH, 2048*3584*2)
    A("v_lshrrev_b32 v24, 1, v21\nv_xor_b32 v24, v24, v20\nv_lshlrev_b32 v24, 4, v24\nv_lshl_add_u32 v24, v21, 7, v24")
    A("s_lshl_b32 s21, s19, 13\ns_add_u32 s21, s21, 65536")
    A("v_add_u32 v18, s21, v24")
    A("v_xor_b32 v19, 64, v18")
    A("v_mov_b32 v8, v18\nv_mov_b32 v9, v19")
    A("s_mov_b32 s38, 0\ns_mov_b32 s39, 0")
    A("v_lshrrev_b32 v24, 2, v21\nv_and_b32 v25, 3, v21\nv_and_b32 v26, 1, v20\nv_lshl_or_b32 v26, v26, 2, v24")
    A("v_lshl_add_u32 v27, v20, 3, v24")
    A("v_lshlrev_b32 v27, 8, v27\nv_lshl_add_u32 v27, v25, 3, v27")
    A("s_lshl_b32 s21, s20, 2")
    for slot in range(7):
        if slot < 3:
            A("s_add_u32 s22, s21, %d\ns_mov_b32 s23, 0" % slot)
        elif slot == 3:
            A("s_mov_b32 s22, 3\ns_lshl_b32 s23, s20, 14")
        else:
            A("s_add_u32 s22, s21, %d\ns_mov_b32 s23, 16384" % (slot-4))
        A("v_xor_b32 v24, s22, v26")
        A("v_lshl_add_u32 v24, v24, 5, v27")
        A("v_add_u32 v%d, s23, v24" % (10+slot))
    A("s_mov_b32 s40, %s\ns_mov_b32 s41, %s\ns_mov_b32 s42, 1.0\ns_mov_b32 s43, 1.0" % (LOG2E_NEG, LOG2E_NEG))

    PT, PW, QT, QW, ACC = 32, 48, 76, 92, 128
    def read_ops(setT, setW, buf, kk):
        ops = []
        if "nords" in EXP: return ops
        for tb in range(4):
            ops.append("ds_read_b128 %s, v%d offset:%d" % (vr(setT+4*tb), 8+kk, tb*2048))
        sreg = 38 + kk
        ops[-1] = ops[-1] + "\ns_add_u32 s%d, s%d, 32768\ns_cmp_ge_u32 s%d, 98304\ns_cselect_b32 s%d, 0, s%d\nv_add_u32 v%d, s%d, v%d" % (sreg, sreg, sreg, sreg, sreg, 8+kk, sreg, 18+kk)
        for slot in range(7):
            for h in range(2):
                ops.append("ds_read_b64_tr_b16 %s, v%d offset:%d" % (vr(setW+4*slot+2*h, 2), 10+slot, buf*32768 + (32*kk+4*h)*256))
        return ops
    def mfma_ops(setT, setW):
        ops = []
        for slot in range(7):
            for tb in range(4):
                a = ACC + (slot*4+tb)*4
                ops.append("v_mfma_f32_16x16x32_bf16 %s, %s, %s, %s" % (vr(a), vr(setW+4*slot), vr(setT+4*tb), vr(a)))
        return ops
    def interleave(mf, fill):
        for i, m in enumerate(mf):
            if "nomfma" not in EXP: A(m)
            for x in fill.get(i, []):
                A(x)

    for i in range(112):
        A("v_mov_b32 v%d, 0" % (ACC+i))
    A("s_waitcnt vmcnt(8)")
    A("s_barrier")
    if "ts" in EXP: A("s_memtime s[62:63]")
    for x in read_ops(PT, PW, 0, 0): A(x)

    def stage(buf, dmaB, dmaA, do_next, vm, extraA=False):
        A("s_waitcnt lgkmcnt(0)")
        rd = read_ops(QT, QW, buf, 1)
        fill = {}
        for i, r in enumerate(rd):
            fill.setdefault(i // 2, []).append(r)
        if extraA:
            for i, g in enumerate(dmaA_ops()):
                fill.setdefault(10 + 2*i, []).extend(g)
        interleave(mfma_ops(PT, PW), fill)
        A("s_waitcnt vmcnt(%d) lgkmcnt(0)" % vm)
        A("s_barrier")
        fill = {}
        rd = read_ops(PT, PW, buf ^ 1, 0) if do_next else []
        dB = dmaB_ops(buf) if (dmaB and "nodma" not in EXP) else []
        dA = dmaA_ops() if (dmaA and "nodma" not in EXP) else []
        gap = 0
        for g in dB:
            fill.setdefault(gap, []).extend(g); gap += 1
        for i, r in enumerate(rd):
            fill.setdefault(gap + i // 2, []).append(r)
        gap += (len(rd) + 1) // 2
        for g in dA:
            fill.setdefault(gap, []).extend(g); gap += 2
        interleave(mfma_ops(QT, QW), fill)

    stage(0, True, True, True, 4, True)
    stage(1, True, True, True, 4)
    A("s_mov_b32 s35, 0")
    A("%sloop:" % L)
    stage(0, True, True, True, 4)
    stage(1, True, True, True, 4)
    A("s_add_u32 s35, s35, 1")
    A("s_cmp_lt_u32 s35, 5")
    A("s_cbranch_scc1 %sloop" % L)
    stage(0, True, True, True, 4)
    stage(1, True, False, True, 4)
    stage(0, False, False, True, 0)
    stage(1, False, False, False, 0)

    if "ts" in EXP: A("s_memtime s[64:65]")
    A("s_nop 7\ns_nop 3")
    A("v_lshlrev_b32 v24, 4, v2")
    A("s_lshl_b32 s21, s18, 11")
    A("v_add_u32 v25, s21, v24")
    A("s_xor_b32 s21, s18, 4\ns_lshl_b32 s21, s21, 11")
    A("v_add_u32 v26, s21, v24")
    s3 = ACC + 12*4
    A("s_cmp_eq_u32 s20, 0")
    A("s_cbranch_scc0 %sx1" % L)
    A("ds_write_b128 v25, %s" % vr(s3+8))
    A("ds_write_b128 v25, %s offset:1024" % vr(s3+12))
    A("s_branch %sx2" % L)
    A("%sx1:" % L)
    A("ds_write_b128 v25, %s" % vr(s3))
    A("ds_write_b128 v25, %s offset:1024" % vr(s3+4))
    A("%sx2:" % L)
    A("s_waitcnt lgkmcnt(0)")
    A("s_barrier")
    A("ds_read_b128 v[32:35], v26")
    A("ds_read_b128 v[36:39], v26 offset:1024")
    A("v_and_b32 v24, 1, v20\nv_lshl_add_u32 v24, v24, 4, v21\nv_lshlrev_b32 v24, 5, v24")
    A("v_lshrrev_b32 v25, 1, v20\nv_lshl_add_u32 v27, v25, 4, v24")
    A("s_mul_i32 s21, s17, 224\ns_mul_i32 s22, s16, 7\ns_add_u32 s21, s21, s22\ns_lshl_b32 s21, s21, 13")
    A("s_lshl_b32 s22, s19, 11\ns_add_u32 s21, s21, s22")
    A("s_lshl_b32 s22, s20, 15\ns_add_u32 s22, s22, s21")
    T = 40
    O = 60
    cnt = 0
    def pair(g0, u0, g1, u1, soff_expr):
        nonlocal cnt
        o = O + 4*(cnt % 4); t = T + 8*(cnt % 2); cnt += 1
        emit_swiglu(A, g0, u0, o, t)
        emit_swiglu(A, g1, u1, o+2, t+4)
        A(soff_expr)
        A("s_nop 0")
        A("v_permlane16_swap_b32 v%d, v%d" % (o, o+2))
        A("v_permlane16_swap_b32 v%d, v%d" % (o+1, o+3))
        A("buffer_store_dwordx4 %s, v27, s[12:15], s23 offen" % vr(o))
    for j in range(3):
        for tp in range(2):
            tb = 2*tp
            g = ACC + (j*4+tb)*4
            u = ACC + ((j+4)*4+tb)*4
            pair(g, u, g+4, u+4, "s_add_u32 s23, s22, %d" % (j*8192 + tb*512))
    A("s_waitcnt lgkmcnt(0)")
    A("s_cmp_eq_u32 s20, 0")
    A("s_cbranch_scc0 %sy1" % L)
    pair(s3, 32, s3+4, 36, "s_add_u32 s23, s21, %d" % (3*8192))
    A("s_branch %sfin" % L)
    A("%sy1:" % L)
    pair(32, s3+8, 36, s3+12, "s_add_u32 s23, s21, %d" % (3*8192 + 2*512))
    A("%sfin:" % L)
    if "ts" in EXP:
        A("s_memtime s[66:67]")
        A("s_waitcnt vmcnt(0)")
        A("s_memtime s[68:69]")
        A("s_memrealtime s[82:83]")
        A("s_waitcnt lgkmcnt(0)")
        A("s_sub_u32 s66, s82, s80\ns_add_u32 s66, s66, s60")
        A("s_sub_u32 s62, s62, s60\ns_sub_u32 s64, s64, s60\ns_sub_u32 s66, s66, s60\ns_sub_u32 s68, s68, s60")
        A("s_mov_b32 s72, s70\ns_mov_b32 s73, s71\ns_mov_b32 s74, 256\ns_mov_b32 s75, 0x00020000")
        if "ts2" in EXP: A("s_sub_u32 s62, s84, s60\ns_sub_u32 s64, s86, s60\ns_sub_u32 s66, s88, s60\ns_sub_u32 s68, s90, s60")
        A("v_mov_b32 v40, s62\nv_mov_b32 v41, s64\nv_mov_b32 v42, s66\nv_mov_b32 v43, s68")
        A("s_lshr_b32 s21, s2, 7\ns_lshl_b32 s21, s21, 3\ns_add_u32 s21, s21, s18\ns_lshl_b32 s21, s21, 4\nv_mov_b32 v44, s21")
        A("s_and_b32 s22, s2, 127\ns_cmp_eq_u32 s22, 5\ns_cbranch_scc0 %send" % L)
        A("v_cmp_eq_u32 vcc, 0, v2\ns_and_saveexec_b64 s[76:77], vcc")
        A("buffer_store_dwordx4 v[40:43], v44, s[72:75], 0 offen")
    A("%send:" % L)
    A("s_endpgm")
    return name
```

```python
from asmlib import *
import os
EXP = os.environ.get("EXP", "")
LDS = 131072
VGPR = 128
K0 = int(os.environ.get("K0", "26"))

def gen_gemm2(A, name="gemm2_kernel"):
    kernel_head(A, name)
    L = "Lg2_"
    A("s_cmp_ge_u32 s2, 256")
    A("s_cbranch_scc1 %send" % L)
    if "ts" in EXP: A("s_memtime s[60:61]\ns_memrealtime s[80:81]\ns_load_dwordx2 s[70:71], s[0:1], 104")
    A("s_load_dwordx2 s[24:25], s[0:1], 72")
    A("s_load_dwordx2 s[26:27], s[0:1], 96")
    A("s_load_dwordx2 s[28:29], s[0:1], 112")
    A("v_lshrrev_b32 v1, 6, v0")
    A("v_and_b32 v2, 63, v0")
    A("v_readfirstlane_b32 s18, v1")
    A("s_and_b32 s21, s2, 7\ns_lshr_b32 s22, s2, 3")
    A("s_and_b32 s44, s22, 1")
    A("s_lshr_b32 s22, s22, 1")
    A("s_lshr_b32 s16, s21, 1\ns_lshl_b32 s16, s16, 2\ns_lshr_b32 s23, s22, 2\ns_add_u32 s16, s16, s23")
    A("s_and_b32 s17, s21, 1\ns_lshl_b32 s17, s17, 2\ns_and_b32 s23, s22, 3\ns_add_u32 s17, s17, s23")
    A("s_lshl_b32 s45, s16, 3\ns_add_u32 s45, s45, s17")
    A("s_and_b32 s19, s18, 1")
    A("s_lshr_b32 s20, s18, 1")
    A("s_cmp_eq_u32 s44, 0")
    A("s_cselect_b32 s46, %d, %d" % (K0, 56-K0))
    A("s_cselect_b32 s47, 0, %d" % K0)
    A("v_lshrrev_b32 v20, 4, v2")
    A("v_and_b32 v21, 15, v2")
    A("v_lshrrev_b32 v22, 3, v2")
    A("v_and_b32 v23, 7, v2")
    for (dst, fx) in ((4, 0), (5, 4)):
        A("v_xor_b32 v24, v23, v20")
        if fx: A("v_xor_b32 v24, 4, v24")
        A("v_lshrrev_b32 v25, 1, v24\nv_and_b32 v24, 1, v24")
        A("v_lshlrev_b32 v25, 13, v25\nv_lshl_add_u32 v25, v22, 5, v25\nv_lshl_add_u32 v%d, v24, 4, v25" % dst)
    A("s_lshl_b32 s21, s19, 2")
    A("v_or_b32 v24, s21, v20")
    A("v_lshrrev_b32 v25, 1, v21\nv_xor_b32 v24, v24, v25\nv_and_b32 v25, 1, v21")
    A("v_lshlrev_b32 v24, 5, v24\nv_lshl_add_u32 v24, v25, 4, v24\nv_lshl_add_u32 v6, v20, 11, v24")
    A("s_lshr_b32 s21, s16, 1\ns_mul_i32 s21, s21, 224\ns_lshl_b32 s22, s47, 2\ns_add_u32 s21, s21, s22\ns_lshl_b32 s30, s21, 13")
    A("s_and_b32 s21, s16, 1\ns_lshl_b32 s21, s21, 12\ns_add_u32 s30, s30, s21\ns_lshl_b32 s21, s18, 9\ns_add_u32 s30, s30, s21")
    A("s_lshl_b32 s21, s47, 17\ns_lshl_b32 s22, s18, 14\ns_add_u32 s31, s21, s22\ns_lshl_b32 s21, s17, 8\ns_add_u32 s31, s31, s21")
    A("s_lshl_b32 s33, s18, 11")
    A("s_mov_b32 s32, 0")
    A("s_mov_b32 s48, 0")
    A("s_waitcnt lgkmcnt(0)")
    make_srd(A, 4, 28, 29, WS_HH, 2048*3584*2)
    make_srd(A, 8, 24, 25, 0, 3584*1024*2)

    def dma_ops():
        ops = []
        pre = ["s_cmp_lt_u32 s48, s46", "s_cselect_b32 s36, s30, 0x80000000", "s_cselect_b32 s37, s31, 0x80000000", "s_add_u32 s49, s33, s32"]
        ops.append(pre + ["s_add_u32 m0, s49, 65536", "s_nop 0", "buffer_load_dwordx4 v4, s[4:7], s36 offen lds"])
        ops.append(["s_add_u32 m0, s49, %d" % (65536+1024), "s_add_u32 s34, s36, 256", "buffer_load_dwordx4 v5, s[4:7], s34 offen lds"])
        ops.append(["s_add_u32 m0, s49, 0", "s_nop 0", "buffer_load_dwordx4 v6, s[8:11], s37 offen lds"])
        ops.append(["s_add_u32 m0, s49, 1024", "s_add_u32 s34, s37, 8192", "buffer_load_dwordx4 v6, s[8:11], s34 offen lds",
                    "s_add_u32 s30, s30, 32768", "s_add_u32 s31, s31, %d" % (64*2048), "s_add_u32 s48, s48, 1",
                    "s_add_u32 s32, s32, 16384", "s_and_b32 s32, s32, 0xffff"])
        return ops
    def emit(groups):
        for g in groups:
            for x in g: A(x)
    emit(dma_ops())
    A("s_barrier")
    emit(dma_ops()); emit(dma_ops()); emit(dma_ops())

    A("v_lshrrev_b32 v24, 1, v21\nv_xor_b32 v24, v24, v20\nv_lshlrev_b32 v24, 4, v24\nv_lshl_add_u32 v24, v21, 7, v24")
    A("s_lshl_b32 s21, s19, 13\ns_add_u32 s21, s21, 65536")
    A("v_add_u32 v14, s21, v24")
    A("v_xor_b32 v15, 64, v14")
    A("v_lshrrev_b32 v24, 2, v21\nv_and_b32 v25, 3, v21\nv_and_b32 v26, 1, v20\nv_lshl_or_b32 v26, v26, 2, v24")
    A("v_lshl_add_u32 v27, v20, 3, v24")
    A("v_lshlrev_b32 v27, 8, v27\nv_lshl_add_u32 v27, v25, 3, v27")
    A("s_lshl_b32 s21, s20, 1")
    for j in range(2):
        A("s_add_u32 s22, s21, %d" % j)
        A("v_xor_b32 v24, s22, v26")
        A("v_lshl_add_u32 v%d, v24, 5, v27" % (16+j))
    A("s_mov_b32 s38, 0\ns_mov_b32 s39, 0")
    PT, PW, QT, QW, ACC = 32, 48, 56, 72, 96
    def read_ops(setT, setW, kk):
        sreg = 38 + kk
        vt = 8 + kk; vw = 10 + 2*kk
        ops = []
        pre = "v_add_u32 v%d, s%d, v%d\nv_add_u32 v%d, s%d, v16\nv_add_u32 v%d, s%d, v17\n" % (vt, sreg, 14+kk, vw, sreg, vw+1, sreg)
        pre += "s_add_u32 s%d, s%d, 16384\ns_and_b32 s%d, s%d, 0xffff\n" % (sreg, sreg, sreg, sreg)
        for tb in range(4):
            ops.append((pre if tb == 0 else "") + "ds_read_b128 %s, v%d offset:%d" % (vr(setT+4*tb), vt, tb*2048))
        for j in range(2):
            for h in range(2):
                ops.append("ds_read_b64_tr_b16 %s, v%d offset:%d" % (vr(setW+4*j+2*h, 2), vw+j, (32*kk+4*h)*256))
        return ops
    def mfma_ops(setT, setW):
        ops = []
        for j in range(2):
            for tb in range(4):
                a = ACC + (j*4+tb)*4
                ops.append("v_mfma_f32_16x16x32_bf16 %s, %s, %s, %s" % (vr(a), vr(setW+4*j), vr(setT+4*tb), vr(a)))
        return ops
    def interleave(mf, fill):
        for i, m in enumerate(mf):
            A(m)
            for x in fill.get(i, []):
                A(x)
    for i in range(32):
        A("v_mov_b32 v%d, 0" % (ACC+i))
    A("s_waitcnt vmcnt(12)")
    A("s_barrier")
    if "ts" in EXP: A("s_memtime s[62:63]")
    for x in read_ops(PT, PW, 0): A(x)
    A("s_mov_b32 s35, 0")
    A("%sloop:" % L)
    A("s_waitcnt lgkmcnt(0)")
    rd = read_ops(QT, QW, 1)
    fill = {}
    for i, r in enumerate(rd):
        fill.setdefault(i // 2, []).append(r)
    interleave(mfma_ops(PT, PW), fill)
    A("s_waitcnt vmcnt(8) lgkmcnt(0)")
    A("s_barrier")
    fill = {}
    rd = read_ops(PT, PW, 0)
    for i, r in enumerate(rd):
        fill.setdefault(i // 2, []).append(r)
    for i, g in enumerate(dma_ops()):
        fill.setdefault(4 + i, []).extend(g)
    interleave(mfma_ops(QT, QW), fill)
    A("s_add_u32 s35, s35, 1")
    A("s_cmp_lt_u32 s35, s46")
    A("s_cbranch_scc1 %sloop" % L)
    if "ts" in EXP: A("s_memtime s[64:65]")
    A("s_waitcnt vmcnt(0) lgkmcnt(0)")
    make_srd(A, 12, 28, 29, WS_PART, 128*65536)
    make_srd(A, 52, 28, 29, WS_FLAG, 128*128)
    A("v_lshlrev_b32 v24, 4, v2")
    A("s_lshl_b32 s21, s45, 16\ns_lshl_b32 s22, s18, 13\ns_add_u32 s21, s21, s22")
    A("s_lshl_b32 s22, s45, 7")
    A("v_mov_b32 v25, 0")
    A("s_cmp_eq_u32 s44, 0")
    A("s_cbranch_scc0 %slate" % L)
    for i in range(8):
        A("s_add_u32 s23, s21, %d" % (i*1024))
        A("buffer_store_dwordx4 %s, v24, s[12:15], s23 offen sc0 sc1" % vr(ACC+4*i))
    A("s_waitcnt vmcnt(0)")
    A("s_barrier")
    A("s_cmp_eq_u32 s18, 0")
    A("s_cbranch_scc0 %sfin" % L)
    A("v_mov_b32 v26, 1")
    A("v_cmp_eq_u32 vcc, 0, v2")
    A("s_and_saveexec_b64 s[56:57], vcc")
    A("buffer_store_dword v26, v25, s[52:55], s22 offen sc0 sc1")
    A("s_waitcnt vmcnt(0)")
    A("s_mov_b64 exec, s[56:57]")
    A("s_branch %sfin" % L)
    A("%slate:" % L)
    make_srd(A, 4, 28, 29, WS_X1, 2048*1024*2)
    make_srd(A, 8, 28, 29, WS_MOD + 5*4096, 4096)
    A("s_mov_b32 s58, s26\ns_mov_b32 s59, s27")
    A("s_lshl_b32 s23, s17, 9\ns_lshl_b32 s34, s20, 7\ns_add_u32 s23, s23, s34")
    A("v_lshlrev_b32 v26, 4, v20")
    A("buffer_load_dwordx4 v[32:35], v26, s[8:11], s23 offen")
    A("buffer_load_dwordx4 v[36:39], v26, s[8:11], s23 offen offset:64")
    A("v_and_b32 v26, 1, v20\nv_lshl_add_u32 v26, v26, 4, v21\nv_lshlrev_b32 v26, 11, v26")
    A("v_lshrrev_b32 v27, 1, v20\nv_lshl_add_u32 v27, v27, 4, v26")
    A("s_lshl_b32 s23, s16, 18\ns_lshl_b32 s34, s19, 17\ns_add_u32 s23, s23, s34\ns_lshl_b32 s34, s17, 8\ns_add_u32 s23, s23, s34\ns_lshl_b32 s34, s20, 6\ns_add_u32 s50, s23, s34")
    XR = 40
    idx = 0
    for j in range(2):
        for tp in range(2):
            A("s_add_u32 s23, s50, %d" % (tp*32*2048))
            A("buffer_load_dwordx4 %s, v27, s[4:7], s23 offen offset:%d" % (vr(XR+4*idx), j*32))
            idx += 1
    A("%spoll:" % L)
    A("buffer_load_dword v28, v25, s[52:55], s22 offen sc0 sc1")
    A("s_waitcnt vmcnt(0)")
    A("v_readfirstlane_b32 s34, v28")
    A("s_cmp_eq_u32 s34, 1")
    A("s_cbranch_scc1 %sgot" % L)
    A("s_sleep 2")
    A("s_branch %spoll" % L)
    A("%sgot:" % L)
    PR = 64
    for i in range(8):
        A("s_add_u32 s23, s21, %d" % (i*1024))
        A("buffer_load_dwordx4 %s, v24, s[12:15], s23 offen sc0 sc1" % vr(PR+4*i))
    make_srd(A, 12, 58, 59, 0, 2048*1024*2)
    idx = 0
    for j in range(2):
        for tp in range(2):
            o = 56 + 4*(idx % 2)
            for t in range(2):
                tb = 2*tp + t
                a = ACC + (j*4+tb)*4
                p = PR + (j*4+tb)*4
                A("s_waitcnt vmcnt(%d)" % (7 - (j*4+tb) + (idx if False else 0) + 0) if False else "s_waitcnt vmcnt(%d)" % (7 - (j*4+tb) + idx))
                for r in range(4):
                    A("v_add_f32 v%d, v%d, v%d" % (a+r, a+r, p+r))
                A("v_cvt_pk_bf16_f32 v%d, v%d, v%d" % (p, a, a+1))
                A("v_cvt_pk_bf16_f32 v%d, v%d, v%d" % (p+1, a+2, a+3))
                A("v_lshlrev_b32 v%d, 16, v%d\nv_and_b32 v%d, 0xffff0000, v%d" % (a, p, a+1, p))
                A("v_lshlrev_b32 v%d, 16, v%d\nv_and_b32 v%d, 0xffff0000, v%d" % (a+2, p+1, a+3, p+1))
                for r in range(4):
                    A("v_mul_f32 v%d, v%d, v%d" % (a+r, a+r, 32+4*j+r))
                A("v_cvt_pk_bf16_f32 v%d, v%d, v%d" % (o+2*t, a, a+1))
                A("v_cvt_pk_bf16_f32 v%d, v%d, v%d" % (o+2*t+1, a+2, a+3))
            A("s_nop 1")
            A("v_permlane16_swap_b32 v%d, v%d" % (o, o+2))
            A("v_permlane16_swap_b32 v%d, v%d" % (o+1, o+3))
            x = XR + 4*idx
            a = ACC + (j*4+2*tp)*4
            for d in range(4):
                A("v_lshlrev_b32 v%d, 16, v%d\nv_and_b32 v%d, 0xffff0000, v%d" % (a+2*d, o+d, a+2*d+1, o+d))
                A("v_lshlrev_b32 v%d, 16, v%d\nv_and_b32 v%d, 0xffff0000, v%d" % (28, x+d, 29, x+d))
                A("v_add_f32 v%d, v%d, v28\nv_add_f32 v%d, v%d, v29" % (a+2*d, a+2*d, a+2*d+1, a+2*d+1))
                A("v_cvt_pk_bf16_f32 v%d, v%d, v%d" % (x+d, a+2*d, a+2*d+1))
            A("s_add_u32 s23, s50, %d" % (tp*32*2048))
            A("buffer_store_dwordx4 %s, v27, s[12:15], s23 offen offset:%d" % (vr(x), j*32))
            idx += 1
    A("%sfin:" % L)
    if "ts" in EXP:
        A("s_waitcnt vmcnt(0)")
        A("s_memtime s[68:69]")
        A("s_memrealtime s[82:83]")
        A("s_waitcnt lgkmcnt(0)")
        A("s_sub_u32 s66, s82, s80")
        A("s_sub_u32 s62, s62, s60\ns_sub_u32 s64, s64, s60\ns_sub_u32 s68, s68, s60")
        A("s_mov_b32 s72, s70\ns_mov_b32 s73, s71\ns_mov_b32 s74, 256\ns_mov_b32 s75, 0x00020000")
        A("v_mov_b32 v40, s62\nv_mov_b32 v41, s64\nv_mov_b32 v42, s66\nv_mov_b32 v43, s68")
        A("s_lshl_b32 s21, s44, 3\ns_add_u32 s21, s21, s18\ns_lshl_b32 s21, s21, 4\nv_mov_b32 v44, s21")
        A("s_cmp_eq_u32 s45, 5\ns_cbranch_scc0 %send" % L)
        A("v_cmp_eq_u32 vcc, 0, v2\ns_and_saveexec_b64 s[76:77], vcc")
        A("buffer_store_dwordx4 v[40:43], v44, s[72:75], 0 offen")
    A("%send:" % L)
    A("s_endpgm")
    return name
```

```python
from asmlib import *
import os
EXP = os.environ.get("EXP", "")
GRID = 256
STR = 272
LDS = 64*STR
VGPR = 192

def gen_kvt(A, name="kvt_kernel"):
    kernel_head(A, name)
    L = "Lkv_"
    A("s_cmp_ge_u32 s2, 256")
    A("s_cbranch_scc1 %send" % L)
    A("s_load_dwordx4 s[24:27], s[0:1], 8")
    A("s_load_dwordx2 s[28:29], s[0:1], 24")
    A("s_load_dwordx2 s[34:35], s[0:1], 112")
    A("s_and_b32 s16, s2, 15")
    A("s_lshr_b32 s17, s2, 4")
    A("v_lshrrev_b32 v1, 3, v0")
    A("v_and_b32 v2, 7, v0")
    A("s_lshl_b32 s18, s17, 18\ns_lshl_b32 s19, s16, 7\ns_add_u32 s18, s18, s19")
    A("v_lshlrev_b32 v3, 13, v1\nv_lshl_add_u32 v3, v2, 4, v3\nv_add_u32 v3, s18, v3")
    A("v_subrev_u32 v4, 6144, v3\nv_subrev_u32 v5, 4096, v3\nv_subrev_u32 v6, 2048, v3")
    A("v_lshlrev_b32 v7, 6, v2\ns_lshl_b32 s19, s16, 9\nv_add_u32 v7, s19, v7")
    A("s_waitcnt lgkmcnt(0)")
    make_srd(A, 4, 24, 25, 0, 2048*1024*2)
    make_srd(A, 8, 26, 27, 0, 2048*1024*2)
    make_srd(A, 12, 28, 29, 0, 1024*8)
    make_srd(A, 20, 34, 35, WS_URT, 1024*2048*2)
    TW, KR, VR = 16, 32, 60
    for q in range(4):
        A("buffer_load_dwordx4 %s, v7, s[12:15], 0 offen offset:%d" % (vr(TW+4*q), 16*q))
    for i in range(3):
        A("buffer_load_dwordx4 %s, v%d, s[4:7], 0 offen" % (vr(KR+4*i), 4+i))
    for i in range(4):
        A("s_movk_i32 s19, %d" % (i*2048))
        A("buffer_load_dwordx4 %s, v3, s[4:7], s19 offen" % vr(KR+12+4*i))
        A("buffer_load_dwordx4 %s, v3, s[8:11], s19 offen" % vr(VR+4*i))
    TF = 80
    KF = 112
    R = 168
    A("s_waitcnt vmcnt(11)")
    for c in range(8):
        unpack2(A, TF+4*c, TF+4*c+1, TW+2*c)
        unpack2(A, TF+4*c+2, TF+4*c+3, TW+2*c+1)
    def unpk(i):
        for q in range(4):
            unpack2(A, KF+8*i+2*q, KF+8*i+2*q+1, KR+4*i+q)
    RES = 16
    for j in range(4):
        A("s_waitcnt vmcnt(%d)" % (6 - 2*j))
        if j == 0:
            for i in range(4): unpk(i)
        else:
            unpk(j+3)
    for j in range(4):
        for cp in range(4):
            c0 = 2*cp
            a = RES + 8*j + c0
            for e in range(2): A("v_mul_f32 v%d, v%d, v%d" % (a+e, TF+4*(c0+e)+3, KF+8*j+c0+e))
            rnd2(A, a, a+1, 8)
            for tap in range(1, 4):
                for e in range(2): A("v_mul_f32 v%d, v%d, v%d" % (10+e, TF+4*(c0+e)+3-tap, KF+8*(j+tap)+c0+e))
                rnd2(A, 10, 11, 8)
                for e in range(2): A("v_add_f32 v%d, v%d, v%d" % (a+e, a+e, 10+e))
                rnd2(A, a, a+1, 8)
            unpack2(A, 10, 11, VR+4*j+cp)
            for e in range(2): A("v_mul_f32 v%d, v%d, v%d" % (a+e, a+e, 10+e))
    A("v_mul_u32_u24 v8, %d, v2\nv_lshlrev_b32 v9, 3, v1\nv_sub_u32 v8, v8, v9\nv_add_u32 v8, 248, v8" % (8*STR))
    for c in range(8):
        A("v_cvt_pk_bf16_f32 v%d, v%d, v%d" % (48+2*c, RES+24+c, RES+16+c))
        A("v_cvt_pk_bf16_f32 v%d, v%d, v%d" % (49+2*c, RES+8+c, RES+c))
        A("ds_write_b64 v8, %s offset:%d" % (vr(48+2*c, 2), c*STR))
    A("s_waitcnt lgkmcnt(0)")
    A("s_barrier")
    A("v_lshrrev_b32 v8, 4, v0\nv_and_b32 v9, 15, v0")
    A("v_mul_u32_u24 v10, %d, v8\nv_lshl_add_u32 v10, v9, 4, v10" % STR)
    for it in range(4):
        A("ds_read_b128 %s, v10 offset:%d" % (vr(16+4*it), it*16*STR))
    A("v_lshlrev_b32 v11, 12, v8\nv_lshl_add_u32 v11, v9, 4, v11")
    A("s_lshl_b32 s18, s16, 18\ns_lshl_b32 s19, s17, 8\ns_sub_u32 s18, s18, s19\ns_add_u32 s18, s18, 3840")
    for it in range(4):
        A("s_waitcnt lgkmcnt(%d)" % (3-it))
        A("s_add_u32 s19, s18, %d" % (it*16*4096))
        A("buffer_store_dwordx4 %s, v11, s[20:23], s19 offen" % vr(16+4*it))
    A("%send:" % L)
    A("s_endpgm")
    return name
```

```python
from asmlib import *
import os
EXP = os.environ.get("EXP", "")
LDS = 1024
VGPR = 160

def gen_ln(A, name="ln_kernel"):
    kernel_head(A, name)
    L = "Lln_"
    A("s_cmp_ge_u32 s2, 256")
    A("s_cbranch_scc1 %send" % L)
    A("s_load_dwordx2 s[24:25], s[0:1], 0")
    A("s_load_dwordx2 s[34:35], s[0:1], 112")
    A("v_lshrrev_b32 v1, 6, v0")
    A("v_and_b32 v2, 63, v0")
    A("v_readfirstlane_b32 s18, v1")
    A("v_lshlrev_b32 v3, 3, v0")
    A("v_lshlrev_b32 v4, 14, v0")
    A("v_lshlrev_b32 v5, 4, v0")
    A("s_lshl_b32 s16, s2, 14")
    A("s_lshl_b32 s17, s2, 4")
    A("s_waitcnt lgkmcnt(0)")
    make_srd(A, 4, 24, 25, 0, 2048*1024*2)
    make_srd(A, 8, 34, 35, WS_YT, 1024*2048*2)
    make_srd(A, 12, 34, 35, WS_MOD, 6144*4)
    make_srd(A, 20, 34, 35, WS_X1, 2048*1024*2)
    make_srd(A, 28, 34, 35, WS_H2, 2048*1024*2)
    XR, YR, MR = 16, 32, 48
    for i in range(8):
        A("s_add_u32 s19, s16, %d" % (i*2048))
        A("buffer_load_dwordx2 %s, v3, s[4:7], s19 offen" % vr(XR+2*i, 2))
    for c in range(4):
        A("s_add_u32 s19, s17, %d" % (c*4096))
        A("buffer_load_dwordx4 %s, v4, s[8:11], s19 offen" % vr(YR+4*c))
    for j in range(5):
        A("s_movk_i32 s19, %d" % (j*4096))
        A("buffer_load_dwordx4 %s, v5, s[12:15], s19 offen" % vr(MR+4*j))
    A("s_cmp_lt_u32 s2, 128")
    A("s_cbranch_scc0 %snoflag" % L)
    make_srd(A, 36, 34, 35, WS_FLAG, 128*128)
    A("v_mov_b32 v6, 0\nv_mov_b32 v7, 0\ns_lshl_b32 s19, s2, 7")
    A("v_cmp_eq_u32 vcc, 0, v0\ns_and_saveexec_b64 s[40:41], vcc")
    A("buffer_store_dword v6, v7, s[36:39], s19 offen")
    A("s_mov_b64 exec, s[40:41]")
    A("%snoflag:" % L)
    X = 72
    S = 104
    T = 112
    ST = 144
    A("s_lshl_b32 s19, s18, 5")
    A("v_mov_b32 v8, s19")
    A("v_mov_b32 v9, 0")
    red_id = [0]
    def block_reduce():
        base = red_id[0] * 128; red_id[0] += 1
        for step in ("row_ror:1", "row_ror:2", "row_ror:4", "row_ror:8"):
            for i in range(8):
                A("v_add_f32_dpp v%d, v%d, v%d %s row_mask:0xf bank_mask:0xf" % (S+i, S+i, S+i, step))
        for i in range(8):
            A("v_add_f32_dpp v%d, v%d, v%d row_bcast:15 row_mask:0xa bank_mask:0xf" % (S+i, S+i, S+i))
        for i in range(8):
            A("v_add_f32_dpp v%d, v%d, v%d row_bcast:31 row_mask:0xc bank_mask:0xf" % (S+i, S+i, S+i))
        A("v_cmp_eq_u32 vcc, 63, v2\ns_and_saveexec_b64 s[40:41], vcc")
        A("ds_write_b128 v8, %s offset:%d" % (vr(S), base))
        A("ds_write_b128 v8, %s offset:%d" % (vr(S+4), base+16))
        A("s_mov_b64 exec, s[40:41]")
        A("s_waitcnt lgkmcnt(0)")
        A("s_barrier")
        for w in range(4):
            A("ds_read_b128 %s, v9 offset:%d" % (vr(T+8*w), base + 32*w))
            A("ds_read_b128 %s, v9 offset:%d" % (vr(T+8*w+4), base + 32*w + 16))
        A("s_waitcnt lgkmcnt(0)")
        for i in range(8):
            A("v_add_f32 v%d, v%d, v%d" % (S+i, T+i, T+8+i))
            A("v_add_f32 v%d, v%d, v%d" % (T+16+i, T+16+i, T+24+i))
        for i in range(8):
            A("v_add_f32 v%d, v%d, v%d" % (S+i, S+i, T+16+i))
    def layernorm(scale1p, shift, dst):
        for i in range(8):
            A("v_add_f32 v%d, v%d, v%d" % (S+i, X+4*i, X+4*i+1))
            A("v_add_f32 v%d, v%d, v%d" % (T+i, X+4*i+2, X+4*i+3))
        for i in range(8):
            A("v_add_f32 v%d, v%d, v%d" % (S+i, S+i, T+i))
        block_reduce()
        for i in range(8):
            A("v_mul_f32 v%d, 0x3a800000, v%d" % (ST+i, S+i))
        for i in range(8):
            for c in range(4):
                A("v_sub_f32 v%d, v%d, v%d" % (T+4*i+c, X+4*i+c, ST+i))
        for i in range(8):
            A("v_mul_f32 v%d, v%d, v%d" % (S+i, T+4*i, T+4*i))
            for c in range(1, 4):
                A("v_fmac_f32 v%d, v%d, v%d" % (S+i, T+4*i+c, T+4*i+c))
        block_reduce()
        for i in range(8):
            A("v_mul_f32 v%d, 0x3a800000, v%d" % (S+i, S+i))
        for i in range(0, 8, 2): rnd2(A, S+i, S+i+1, T+i)
        for i in range(8):
            A("v_add_f32 v%d, 0x3727c5ac, v%d" % (S+i, S+i))
        for i in range(0, 8, 2): rnd2(A, S+i, S+i+1, T+i)
        for i in range(8):
            A("v_sqrt_f32 v%d, v%d" % (S+i, S+i))
        A("s_nop 0")
        for i in range(0, 8, 2): rnd2(A, S+i, S+i+1, T+i)
        for i in range(8):
            A("v_rcp_f32 v%d, v%d" % (T+24+i, S+i))
        for i in range(0, 8, 2): rnd2(A, ST+i, ST+i+1, T+i)
        for i in range(8):
            d = dst + 4*i
            for c in range(4): A("v_sub_f32 v%d, v%d, v%d" % (d+c, X+4*i+c, ST+i))
            rnd2(A, d, d+1, T); rnd2(A, d+2, d+3, T+1)
            for c in range(4): A("v_mul_f32 v%d, v%d, v%d" % (T+4+c, d+c, T+24+i))
            for c in range(4): A("v_fma_f32 v%d, -v%d, v%d, v%d" % (d+c, T+4+c, S+i, d+c))
            for c in range(4): A("v_fma_f32 v%d, v%d, v%d, v%d" % (d+c, d+c, T+24+i, T+4+c))
            rnd2(A, d, d+1, T); rnd2(A, d+2, d+3, T+1)
            for c in range(4): A("v_mul_f32 v%d, v%d, v%d" % (d+c, d+c, scale1p+c))
            rnd2(A, d, d+1, T); rnd2(A, d+2, d+3, T+1)
            for c in range(4): A("v_add_f32 v%d, v%d, v%d" % (d+c, d+c, shift+c))
            rnd2(A, d, d+1, T); rnd2(A, d+2, d+3, T+1)
    A("s_waitcnt vmcnt(9)")
    for i in range(8):
        unpack2(A, X+4*i, X+4*i+1, XR+2*i)
        unpack2(A, X+4*i+2, X+4*i+3, XR+2*i+1)
    A("s_waitcnt vmcnt(0)")
    SA, CA, GA, SB, CB = MR, MR+4, MR+8, MR+12, MR+16
    for c in range(4):
        A("v_add_f32 v%d, 1.0, v%d" % (CA+c, CA+c))
        A("v_add_f32 v%d, 1.0, v%d" % (CB+c, CB+c))
    rnd2(A, CA, CA+1, T); rnd2(A, CA+2, CA+3, T+1); rnd2(A, CB, CB+1, T+2); rnd2(A, CB+2, CB+3, T+3)
    H = 152 - 152 + 0
    HB = 160
    layernorm(CA, SA, HB)
    for i in range(8):
        d = HB + 4*i
        for c in range(4):
            src = YR + 4*c + i//2
            if i % 2 == 0: A("v_lshlrev_b32 v%d, 16, v%d" % (T+4+c, src))
            else: A("v_and_b32 v%d, 0xffff0000, v%d" % (T+4+c, src))
        for c in range(4): A("v_mul_f32 v%d, v%d, v%d" % (d+c, d+c, T+4+c))
        rnd2(A, d, d+1, T); rnd2(A, d+2, d+3, T+1)
        for c in range(4): A("v_mul_f32 v%d, v%d, v%d" % (d+c, d+c, GA+c))
        rnd2(A, d, d+1, T); rnd2(A, d+2, d+3, T+1)
        for c in range(4): A("v_add_f32 v%d, v%d, v%d" % (X+4*i+c, X+4*i+c, d+c))
        A("v_cvt_pk_bf16_f32 v%d, v%d, v%d" % (XR+2*i, X+4*i, X+4*i+1))
        A("v_cvt_pk_bf16_f32 v%d, v%d, v%d" % (XR+2*i+1, X+4*i+2, X+4*i+3))
        unpack2(A, X+4*i, X+4*i+1, XR+2*i)
        unpack2(A, X+4*i+2, X+4*i+3, XR+2*i+1)
        A("s_add_u32 s19, s16, %d" % (i*2048))
        A("buffer_store_dwordx2 %s, v3, s[20:23], s19 offen" % vr(XR+2*i, 2))
    layernorm(CB, SB, HB)
    for i in range(8):
        d = HB + 4*i
        A("v_cvt_pk_bf16_f32 v%d, v%d, v%d" % (YR+2*i, d, d+1))
        A("v_cvt_pk_bf16_f32 v%d, v%d, v%d" % (YR+2*i+1, d+2, d+3))
        A("s_add_u32 s19, s16, %d" % (i*2048))
        A("buffer_store_dwordx2 %s, v3, s[28:31], s19 offen" % vr(YR+2*i, 2))
    A("%send:" % L)
    A("s_endpgm")
    return name
VGPR = 192
```

```python
import sys
from asmlib import *
import gen_gemm1

HEADER = open("adaLN_cond__ssm_conv_h3__glu_gated_swiglu__prompt.s.ref").read().split("; Override launch")[0]

def build(kernels, out):
    A = Asm()
    launches = []
    descs = []
    body = Asm()
    body('.amdgcn_target "amdgcn-amd-amdhsa--gfx950"')
    for k in kernels:
        if k == "kvt":
            import gen_kvt
            n = gen_kvt.gen_kvt(body); launches.append((n, gen_kvt.GRID, gen_kvt.BLOCK, gen_kvt.LDS)); descs.append((n, gen_kvt.VGPR))
        elif k == "conv":
            import gen_conv
            n = gen_conv.gen_conv(body); launches.append((n, gen_conv.GRID, gen_conv.BLOCK, gen_conv.LDS)); descs.append((n, gen_conv.VGPR))
        elif k == "ln":
            import gen_ln
            n = gen_ln.gen_ln(body); launches.append((n, 256, gen_ln.BLOCK, gen_ln.LDS)); descs.append((n, gen_ln.VGPR))
        elif k == "gemm1":
            n = gen_gemm1.gen_gemm1(body); launches.append((n, 256, 512, gen_gemm1.LDS)); descs.append((n, gen_gemm1.VGPR))
        elif k == "front":
            import gen_front
            n = gen_front.gen_front(body); launches.append((n, 256, gen_front.BLOCK, gen_front.LDS)); descs.append((n, gen_front.VGPR))
        elif k == "ffn":
            import gen_ffn
            n = gen_ffn.gen_ffn(body); launches.append((n, 256, gen_ffn.BLOCK, gen_ffn.LDS)); descs.append((n, gen_ffn.VGPR))
        elif k == "gemm2":
            import gen_gemm2
            n = gen_gemm2.gen_gemm2(body); launches.append((n, 256, 512, gen_gemm2.LDS)); descs.append((n, gen_gemm2.VGPR))
    for n, v in descs:
        kernel_desc(body, n, v)
    txt = HEADER
    for n, g, b, lds in launches:
        txt += "; @launch kernel=%s grid=(%d,1,1) block=(%d,1,1) lds=%d\n" % (n, g, b, lds)
    txt += body.text()
    open(out, "w").write(txt)

if __name__ == "__main__":
    build(sys.argv[2].split(","), sys.argv[1])
```

```python
class Asm:
    def __init__(self):
        self.lines = []
    def __call__(self, s):
        for l in s.split("\n"):
            l = l.strip()
            if l:
                self.lines.append(("" if l.endswith(":") or l.startswith(".") else "    ") + l)
    def text(self):
        return "\n".join(self.lines) + "\n"

def vr(b, n=4):
    return "v[%d:%d]" % (b, b + n - 1) if n > 1 else "v%d" % b
def sr(b, n=4):
    return "s[%d:%d]" % (b, b + n - 1) if n > 1 else "s%d" % b

def kernel_head(A, name):
    A(".text")
    A(".globl %s" % name)
    A(".p2align 8")
    A(".type %s,@function" % name)
    A("%s:" % name)

def kernel_desc(A, name, vgpr, sgpr=102):
    acc = (vgpr + 3) // 4 * 4
    A('.section .rodata,"a"')
    A(".p2align 6")
    A(".amdhsa_kernel %s" % name)
    A(".amdhsa_next_free_vgpr %d" % vgpr)
    A(".amdhsa_next_free_sgpr %d" % sgpr)
    A(".amdhsa_accum_offset %d" % acc)
    A(".amdhsa_group_segment_fixed_size 0")
    A(".amdhsa_kernarg_size 120")
    A(".amdhsa_user_sgpr_count 2")
    A(".amdhsa_user_sgpr_kernarg_segment_ptr 1")
    A(".amdhsa_system_sgpr_workgroup_id_x 1")
    A(".end_amdhsa_kernel")

def make_srd(A, d, blo, bhi, off, nbytes):
    if off:
        A("s_add_u32 s%d, s%d, 0x%x" % (d, blo, off))
        A("s_addc_u32 s%d, s%d, 0" % (d + 1, bhi))
    else:
        A("s_mov_b32 s%d, s%d" % (d, blo))
        A("s_mov_b32 s%d, s%d" % (d + 1, bhi))
    A("s_mov_b32 s%d, 0x%x" % (d + 2, nbytes))
    A("s_mov_b32 s%d, 0x00020000" % (d + 3))

WS_MOD = 0
WS_FLAG = 0x10000
WS_YT = 1 << 20
WS_X1 = 8 << 20
WS_H2 = 12 << 20
WS_HH = 16 << 20
WS_PART = 32 << 20
WS_URT = 48 << 20

def rnd2(A, a, b, t):
    A("v_cvt_pk_bf16_f32 v%d, v%d, v%d" % (t, a, b))
    A("v_lshlrev_b32 v%d, 16, v%d" % (a, t))
    A("v_and_b32 v%d, 0xffff0000, v%d" % (b, t))

def unpack2(A, lo, hi, src):
    A("v_lshlrev_b32 v%d, 16, v%d" % (lo, src))
    A("v_and_b32 v%d, 0xffff0000, v%d" % (hi, src))

import os as _os
TS = "ts" in _os.environ.get("EXP", "").split(",")
def ts_begin(A):
    if TS: A("s_memtime s[84:85]\ns_load_dwordx2 s[80:81], s[0:1], 104")
def ts(A, i):
    if TS: A("s_memtime s[%d:%d]" % (86+2*i, 87+2*i))
def ts_dump(A, n, endlabel, wg=5, vt=40):
    if not TS: return
    A("s_waitcnt vmcnt(0) lgkmcnt(0)")
    A("s_memtime s[%d:%d]" % (86+2*n, 87+2*n))
    A("s_waitcnt lgkmcnt(0)")
    A("s_cmp_eq_u32 s2, %d\ns_cbranch_scc0 %s" % (wg, endlabel))
    A("s_mov_b32 s82, 256\ns_mov_b32 s83, 0x00020000")
    A("v_lshrrev_b32 v%d, 6, v0\nv_lshlrev_b32 v%d, 5, v%d\nv_add_u32 v%d, %d, v%d" % (vt+8, vt+8, vt+8, vt+8, int(_os.environ.get("TSOFF", "0")), vt+8))
    A("v_and_b32 v%d, 63, v0\nv_cmp_eq_u32 vcc, 0, v%d\ns_and_saveexec_b64 s[78:79], vcc" % (vt, vt))
    for i in range(n+1):
        A("s_sub_u32 s%d, s%d, s84\nv_mov_b32 v%d, s%d" % (86+2*i, 86+2*i, vt+i, 86+2*i))
    for i in range(n+1, 8):
        A("v_mov_b32 v%d, 0" % (vt+i))
    A("buffer_store_dwordx4 v[%d:%d], v%d, s[80:83], 0 offen" % (vt, vt+3, vt+8))
    A("buffer_store_dwordx4 v[%d:%d], v%d, s[80:83], 0 offen offset:16" % (vt+4, vt+7, vt+8))
```

```python
from asmlib import *
import os
EXP = os.environ.get("EXP", "")
GRID = 256
GV = os.environ.get("GV", "conv")
BLOCK = 512 if GV == "conv" else 256
HSTR = 4160
HCH = 4*HSTR
UR0 = 0
URS = 4608
SC0 = UR0 + 4*URS
RED0 = SC0 + 4096
H0 = RED0 + 4096
LDS = H0 + 4*HCH
VGPR = 192
LOG2E_NEG = "0xbfb8aa3b"
YS = H0
YSTR = 4096 + 16

def gen_conv(A, name="conv_kernel"):
    kernel_head(A, name)
    L = "Lcv_"
    A("s_cmp_ge_u32 s2, 256")
    A("s_cbranch_scc1 %send" % L)
    ts_begin(A)
    A("s_load_dwordx4 s[28:31], s[0:1], 32")
    A("s_load_dwordx2 s[34:35], s[0:1], 112")
    A("v_lshrrev_b32 v1, 6, v0")
    A("v_and_b32 v2, 63, v0")
    A("v_readfirstlane_b32 s18, v1")
    A("s_nop 3")
    A("s_cmp_ge_u32 s18, 4")
    A("s_cbranch_scc1 %spf" % L)
    A("s_and_b32 s16, s2, 7\ns_lshl_b32 s16, s16, 5\ns_lshr_b32 s17, s2, 3\ns_add_u32 s16, s16, s17")
    A("s_lshl_b32 s17, s16, 2\ns_add_u32 s17, s17, s18")
    A("v_lshlrev_b32 v3, 4, v2\nv_subrev_u32 v8, 32, v3\nv_subrev_u32 v9, 16, v3\nv_add_u32 v5, %d, v3" % (62*16))
    A("s_waitcnt lgkmcnt(0)")
    A("s_lshl_b32 s19, s16, 3\ns_add_u32 s30, s30, s19\ns_addc_u32 s31, s31, 0")
    A("s_load_dwordx2 s[48:49], s[30:31], 0")
    A("s_lshl_b32 s19, s17, 12\ns_add_u32 s12, s28, s19\ns_addc_u32 s13, s29, 0\ns_movk_i32 s14, 4096\ns_mov_b32 s15, 0x00020000")
    make_srd(A, 4, 34, 35, WS_URT, 1024*2048*2)
    HS = 104
    for it in range(5):
        if it == 0:
            A("buffer_load_dwordx4 %s, v8, s[12:15], 0 offen" % vr(HS))
            A("buffer_load_dwordx2 %s, v9, s[12:15], 0 offen" % vr(HS+4, 2))
        else:
            A("buffer_load_dwordx4 %s, v5, s[12:15], 0 offen offset:%d" % (vr(HS+8*it), (it-1)*1024))
            A("buffer_load_dwordx2 %s, v5, s[12:15], 0 offen offset:%d" % (vr(HS+8*it+4, 2), (it-1)*1024+16))
    A("s_mul_i32 s50, s18, %d" % URS)
    for i in range(4):
        A("s_add_u32 m0, s50, %d" % (UR0 + i*1024))
        A("s_add_u32 s40, s19, %d" % (i*1024))
        A("buffer_load_dwordx4 v3, s[4:7], s40 offen lds")
    A("s_waitcnt lgkmcnt(0)")
    A("s_cmp_lt_u32 s18, 2\ns_cselect_b32 s51, s48, s49\ns_lshl_b32 s57, s51, 16\ns_and_b32 s51, s51, 0xffff0000\ns_bitcmp1_b32 s18, 0\ns_cselect_b32 s51, s51, s57")
    A("v_mov_b32 v12, 0\nv_mov_b32 v13, 0\nv_mov_b32 v14, 0\nv_mov_b32 v15, 0")
    A("s_mul_i32 s19, s18, %d\ns_add_u32 s19, s19, %d" % (URS, UR0 + 4096))
    A("v_add_u32 v11, s19, v3")
    A("v_cmp_gt_u32 vcc, 32, v2\ns_and_saveexec_b64 s[58:59], vcc")
    A("ds_write_b128 v11, v[12:15]")
    A("s_mov_b64 exec, s[58:59]")
    A("s_mul_i32 s19, s18, %d\ns_add_u32 s19, s19, %d" % (HCH, H0))
    A("v_add_u32 v9, s19, v3")
    for it in range(5):
        A("s_waitcnt vmcnt(%d)" % (14 - 2*(it+1)))
        d = HS + 8*it
        if it == 4:
            A("v_cmp_gt_u32 vcc, 4, v2\ns_and_saveexec_b64 s[58:59], vcc")
        off = it*1024
        A("ds_write_b128 v9, %s offset:%d" % (vr(d), off))
        for q in range(4): A("v_alignbit_b32 v%d, v%d, v%d, 16" % (12+q, d+q+1, d+q))
        A("ds_write_b128 v9, v[12:15] offset:%d" % (off + HSTR))
        for q in range(4): A("v_mov_b32 v%d, v%d" % (16+q, d+q+1))
        A("ds_write_b128 v9, v[16:19] offset:%d" % (off + 2*HSTR))
        for q in range(4): A("v_alignbit_b32 v%d, v%d, v%d, 16" % (20+q, d+q+2, d+q+1))
        A("ds_write_b128 v9, v[20:23] offset:%d" % (off + 3*HSTR))
        if it == 4:
            A("s_mov_b64 exec, s[58:59]")
    ts(A, 0)
    A("s_waitcnt vmcnt(0)")
    ts(A, 1)
    A("v_and_b32 v10, 15, v2\nv_lshrrev_b32 v11, 4, v2")
    A("v_add_u32 v12, 1, v10\nv_and_b32 v13, 3, v12\nv_lshrrev_b32 v12, 2, v12")
    A("v_mul_u32_u24 v13, %d, v13\nv_lshl_add_u32 v13, v12, 3, v13\nv_lshl_add_u32 v13, v11, 4, v13" % HSTR)
    A("s_mul_i32 s19, s18, %d\ns_add_u32 s19, s19, %d" % (HCH, H0))
    A("v_add_u32 v3, s19, v13")
    A("v_lshlrev_b32 v12, 5, v10\nv_lshlrev_b32 v13, 4, v11\nv_sub_u32 v12, v13, v12")
    A("s_mul_i32 s19, s18, %d\ns_add_u32 s19, s19, %d" % (URS, UR0 + 4064 - 512*7))
    A("v_add_u32 v4, s19, v12")
    ACC = 160
    FA = [32, 96]; FB = [64, 128]
    def rd(r, s):
        ops = []
        for p in range(8):
            ops.append("ds_read_b64 %s, v3 offset:%d" % (vr(FA[s]+4*p, 2), 512*p + 64*r))
            ops.append("ds_read_b64 %s, v3 offset:%d" % (vr(FA[s]+4*p+2, 2), 512*p + 64*r + 8))
            ops.append("ds_read_b128 %s, v4 offset:%d" % (vr(FB[s]+4*p), 512*(7-p) + 64*r))
        return ops
    for i in range(32): A("v_mov_b32 v%d, 0" % (ACC+i))
    A("s_waitcnt lgkmcnt(0)")
    for x in rd(0, 0): A(x)
    for r in range(8):
        s = r & 1
        A("s_waitcnt lgkmcnt(0)")
        nxt = rd(r+1, s ^ 1) if r < 7 else []
        k = 0; m = 0
        for t in range(8):
            for p in range(t+1):
                q = t - p
                A("v_mfma_f32_16x16x32_bf16 %s, %s, %s, %s" % (vr(ACC+4*t), vr(FA[s]+4*p), vr(FB[s]+4*q), vr(ACC+4*t)))
                if k < len(nxt): A(nxt[k]); k += 1
                m += 1
    ts(A, 2)
    A("v_lshlrev_b32 v12, 5, v10\nv_lshl_add_u32 v12, v11, 3, v12")
    A("s_mul_i32 s19, s18, %d\ns_add_u32 s19, s19, %d" % (URS, UR0 + 4088 - 512*7))
    A("v_sub_u32 v13, s19, v12")
    for t in range(8):
        A("ds_read_b64 %s, v13 offset:%d" % (vr(32+2*t, 2), 512*(7-t)))
    A("s_barrier")
    A("s_mul_i32 s19, s18, %d\ns_add_u32 s19, s19, %d" % (YSTR, YS))
    A("v_add_u32 v14, s19, v12")
    A("s_waitcnt lgkmcnt(0)")
    for t in range(8):
        a = ACC + 4*t
        u = 32 + 2*t
        rnd2(A, a, a+1, 16); rnd2(A, a+2, a+3, 17)
        A("v_and_b32 v20, 0xffff0000, v%d\nv_lshlrev_b32 v21, 16, v%d\nv_and_b32 v22, 0xffff0000, v%d\nv_lshlrev_b32 v23, 16, v%d" % (u+1, u+1, u, u))
        for q in range(4): A("v_mul_f32 v%d, s51, v%d" % (20+q, 20+q))
        rnd2(A, 20, 21, 16); rnd2(A, 22, 23, 17)
        for q in range(4): A("v_add_f32 v%d, v%d, v%d" % (a+q, a+q, 20+q))
        A("v_cvt_pk_bf16_f32 v%d, v%d, v%d" % (u, a, a+1))
        A("v_cvt_pk_bf16_f32 v%d, v%d, v%d" % (u+1, a+2, a+3))
        A("ds_write_b64 v14, %s offset:%d" % (vr(u, 2), 512*t))
    A("s_waitcnt lgkmcnt(0)")
    A("s_barrier")
    A("v_and_b32 v12, 3, v0\nv_lshrrev_b32 v13, 2, v0")
    A("v_mul_u32_u24 v14, %d, v12\nv_lshl_add_u32 v14, v13, 4, v14\nv_add_u32 v14, %d, v14" % (YSTR, YS))
    for it in range(4):
        A("ds_read_b128 %s, v14 offset:%d" % (vr(32+4*it), it*1024))
    make_srd(A, 4, 34, 35, WS_YT, 1024*2048*2)
    A("v_lshlrev_b32 v15, 14, v13\nv_lshl_add_u32 v15, v12, 4, v15")
    A("s_lshl_b32 s19, s16, 6")
    for it in range(4):
        A("s_waitcnt lgkmcnt(%d)" % (3-it))
        A("s_add_u32 s50, s19, %d" % (it*64*16384))
        A("buffer_store_dwordx4 %s, v15, s[4:7], s50 offen" % vr(32+4*it))
    ts(A, 3)
    ts_dump(A, 4, L+"end")
    A("s_endpgm")
    A("%spf:" % L)
    A("v_subrev_u32 v0, 256, v0")
    A("s_cmp_lt_u32 s2, 192")
    A("s_cbranch_scc1 %sgemv" % L)
    A("s_load_dwordx2 s[24:25], s[0:1], 0")
    A("s_sub_u32 s56, s2, 192\ns_lshl_b32 s56, s56, 16")
    A("v_lshlrev_b32 v6, 7, v0")
    A("s_waitcnt lgkmcnt(0)")
    make_srd(A, 4, 24, 25, 0, 2048*1024*2)
    if os.environ.get("SLP", "0") == "1": A("s_sleep 20")
    A("buffer_load_dword v20, v6, s[4:7], s56 offen")
    A("s_add_u32 s56, s56, 32768")
    A("buffer_load_dword v21, v6, s[4:7], s56 offen")
    A("s_barrier")
    A("s_barrier")
    A("s_endpgm")
    A("%sgemv:" % L)
    A("s_load_dwordx4 s[36:39], s[0:1], 80")
    A("s_cmp_ge_u32 s2, 96\ns_cselect_b32 s41, 1, 0\ns_mul_i32 s42, s41, 96\ns_sub_u32 s42, s2, s42")
    A("v_lshrrev_b32 v9, 3, v0\ns_movk_i32 s19, 12288\nv_mul_lo_u32 v7, v9, s19")
    A("v_and_b32 v8, 7, v0\nv_lshl_add_u32 v7, v8, 4, v7")
    A("s_mul_i32 s43, s41, %d\ns_lshl_b32 s19, s42, 7\ns_add_u32 s43, s43, s19" % (512*12288))
    A("v_lshlrev_b32 v4, 1, v9\ns_lshl_b32 s19, s41, 10")
    A("s_waitcnt lgkmcnt(0)")
    make_srd(A, 20, 38, 39, 0, 1024*6144*2)
    make_srd(A, 52, 36, 37, 0, 2048)
    for i in range(16):
        A("buffer_load_ushort v%d, v4, s[52:55], s19 offen offset:%d" % (60+i, 64*i))
    if os.environ.get("SLP", "0") == "1": A("s_sleep 20")
    WR = 96
    for i in range(16):
        A("s_add_u32 s50, s43, %d" % (i*32*12288))
        A("buffer_load_dwordx4 %s, v7, s[20:23], s50 offen" % vr(WR+4*i))
    A("s_waitcnt vmcnt(16)")
    for i in range(16): A("v_lshlrev_b32 v%d, 16, v%d" % (60+i, 60+i))
    for i in range(16): A("v_mul_f32 v%d, %s, v%d" % (32+i, LOG2E_NEG, 60+i))
    for i in range(16): A("v_exp_f32 v%d, v%d" % (32+i, 32+i))
    for i in range(16): A("v_add_f32 v%d, 1.0, v%d" % (32+i, 32+i))
    for i in range(16): A("v_rcp_f32 v%d, v%d" % (32+i, 32+i))
    for i in range(16): A("v_mul_f32 v%d, v%d, v%d" % (60+i, 60+i, 32+i))
    for i in range(0, 16, 2): rnd2(A, 60+i, 61+i, 32+i)
    for q in range(8): A("v_mov_b32 v%d, 0" % (80+q))
    for i in range(16):
        w = WR + 4*i
        A("s_waitcnt vmcnt(%d)" % (15-i))
        for q in range(4):
            A("v_lshlrev_b32 v12, 16, v%d\nv_and_b32 v13, 0xffff0000, v%d" % (w+q, w+q))
            A("v_fmac_f32 v%d, v%d, v12\nv_fmac_f32 v%d, v%d, v13" % (80+2*q, 60+i, 81+2*q, 60+i))
    A("s_nop 1")
    for q in range(8):
        A("v_add_f32_dpp v%d, v%d, v%d row_ror:8 row_mask:0xf bank_mask:0xf" % (80+q, 80+q, 80+q))
    A("v_lshrrev_b32 v10, 4, v0\nv_lshlrev_b32 v10, 8, v10\nv_and_b32 v11, 7, v0\nv_lshl_add_u32 v10, v11, 5, v10")
    A("v_and_b32 v11, 15, v0\nv_cmp_gt_u32 vcc, 8, v11\ns_and_saveexec_b64 s[58:59], vcc")
    A("ds_write_b128 v10, v[80:83] offset:%d\nds_write_b128 v10, v[84:87] offset:%d" % (RED0, RED0+16))
    A("s_mov_b64 exec, s[58:59]")
    A("s_waitcnt lgkmcnt(0)")
    A("s_barrier")
    A("s_barrier")
    A("s_cmp_eq_u32 s18, 4")
    A("s_cbranch_scc0 %send" % L)
    A("v_lshlrev_b32 v10, 2, v2")
    for i in range(16):
        A("ds_read_b32 v%d, v10 offset:%d" % (60+i, RED0 + i*256))
    A("s_waitcnt lgkmcnt(0)")
    for i in range(1, 16): A("v_add_f32 v60, v60, v%d" % (60+i))
    make_srd(A, 20, 34, 35, WS_MOD, 2*6144*4)
    A("s_mul_i32 s19, s41, 24576\ns_lshl_b32 s50, s42, 8\ns_add_u32 s19, s19, s50")
    A("buffer_store_dword v60, v10, s[20:23], s19 offen")
    A("%send:" % L)
    A("s_endpgm")
    return name
```

```python
from asmlib import *
import os
EXP = os.environ.get("EXP", "")
LOG2E_NEG = "0xbfb8aa3b"
LDS = 163840
VGPR = 240

def emit_swiglu(A, g, u, out, t):
    rnd2(A, g, g+1, t); rnd2(A, g+2, g+3, t+1)
    rnd2(A, u, u+1, t+2); rnd2(A, u+2, u+3, t+3)
    A("v_pk_mul_f32 %s, %s, s[40:41]" % (vr(t, 2), vr(g, 2)))
    A("v_pk_mul_f32 %s, %s, s[40:41]" % (vr(t+2, 2), vr(g+2, 2)))
    for i in range(4):
        A("v_exp_f32 v%d, v%d" % (t+i, t+i))
    A("s_nop 0")
    A("v_pk_add_f32 %s, %s, s[42:43]" % (vr(t, 2), vr(t, 2)))
    A("v_pk_add_f32 %s, %s, s[42:43]" % (vr(t+2, 2), vr(t+2, 2)))
    for i in range(4):
        A("v_rcp_f32 v%d, v%d" % (t+i, t+i))
    A("s_nop 0")
    A("v_pk_mul_f32 %s, %s, %s" % (vr(g, 2), vr(g, 2), vr(t, 2)))
    A("v_pk_mul_f32 %s, %s, %s" % (vr(g+2, 2), vr(g+2, 2), vr(t+2, 2)))
    rnd2(A, g, g+1, t); rnd2(A, g+2, g+3, t+1)
    A("v_pk_mul_f32 %s, %s, %s" % (vr(g, 2), vr(g, 2), vr(u, 2)))
    A("v_pk_mul_f32 %s, %s, %s" % (vr(g+2, 2), vr(g+2, 2), vr(u+2, 2)))
    A("v_cvt_pk_bf16_f32 v%d, v%d, v%d" % (out, g, g+1))
    A("v_cvt_pk_bf16_f32 v%d, v%d, v%d" % (out+1, g+2, g+3))

def gen_gemm1(A, name="gemm1_kernel"):
    kernel_head(A, name)
    L = "Lg1_"
    A("s_cmp_ge_u32 s2, 256")
    A("s_cbranch_scc1 %send" % L)
    if "ts" in EXP: A("s_memtime s[60:61]\ns_memrealtime s[80:81]\ns_load_dwordx2 s[70:71], s[0:1], 104")
    A("s_load_dwordx4 s[24:27], s[0:1], 56")
    A("s_load_dwordx2 s[28:29], s[0:1], 112")
    A("s_load_dwordx2 s[44:45], s[0:1], 72")
    A("v_lshrrev_b32 v1, 6, v0")
    A("v_and_b32 v2, 63, v0")
    A("v_readfirstlane_b32 s18, v1")
    A("s_and_b32 s16, s2, 7\ns_lshl_b32 s16, s16, 2\ns_lshr_b32 s17, s2, 3\ns_and_b32 s17, s17, 3\ns_add_u32 s16, s16, s17")
    A("s_lshr_b32 s17, s2, 5")
    A("s_and_b32 s19, s18, 3")
    A("s_lshr_b32 s20, s18, 2")
    A("v_lshrrev_b32 v20, 4, v2")
    A("v_and_b32 v21, 15, v2")
    A("v_lshrrev_b32 v22, 3, v2")
    A("v_and_b32 v23, 7, v2")
    A("v_xor_b32 v24, v23, v20\nv_lshlrev_b32 v24, 4, v24\nv_lshl_add_u32 v4, v22, 11, v24")
    A("v_xor_b32 v5, 64, v4")
    A("v_lshrrev_b32 v24, 1, v21\nv_and_b32 v25, 1, v21")
    A("s_movk_i32 s21, 7168")
    A("v_mul_lo_u32 v26, v20, s21")
    A("v_lshl_add_u32 v26, v25, 4, v26")
    A("v_mov_b32 v28, 0x80000000")
    for (dst, fx) in ((6, 0), (7, 4)):
        A("v_xor_b32 v27, v24, v20")
        if fx: A("v_xor_b32 v27, %d, v27" % fx)
        A("v_cmp_ne_u32 vcc, 7, v27")
        A("v_lshl_add_u32 v27, v27, 5, v26")
        A("s_nop 1")
        A("v_cndmask_b32 v%d, v28, v27, vcc" % dst)
    A("s_lshl_b32 s30, s17, 19\ns_lshl_b32 s21, s18, 16\ns_add_u32 s30, s30, s21")
    A("s_mul_i32 s31, s16, 224\ns_mul_i32 s21, s19, %d\ns_add_u32 s31, s31, s21" % (16*7168))
    A("s_lshl_b32 s33, s18, 12")
    A("s_add_u32 s32, s33, 65536")
    A("s_add_u32 s36, s33, %d" % (65536 + 98304))
    A("s_waitcnt lgkmcnt(0)")
    if "ts2" in EXP: A("s_memtime s[84:85]")
    make_srd(A, 4, 28, 29, WS_H2, 2048*1024*2)
    A("s_cmp_eq_u32 s20, 0")
    A("s_cselect_b32 s8, s24, s26")
    A("s_cselect_b32 s9, s25, s27")
    A("s_mov_b32 s10, %d" % (1024*3584*2))
    A("s_mov_b32 s11, 0x00020000")

    def dmaA_ops():
        ops = []
        for ii in range(4):
            ops.append(["s_add_u32 m0, s32, %d" % (ii*1024),
                        "s_add_u32 s34, s30, %d" % (ii*8*2048),
                        "buffer_load_dwordx4 v%d, s[4:7], s34 offen lds" % (4 + (ii & 1))])
        ops[-1] = ops[-1] + ["s_add_u32 s30, s30, 128", "s_add_u32 s32, s32, 32768", "s_cmp_ge_u32 s32, s36",
                             "s_cselect_b32 s37, 98304, 0", "s_sub_u32 s32, s32, s37"]
        return ops
    def dmaB_ops(buf):
        ops = []
        for jj in range(4):
            ops.append(["s_add_u32 m0, s33, %d" % (buf*32768 + jj*1024),
                        "s_add_u32 s34, s31, %d" % (jj*4*7168),
                        "buffer_load_dwordx4 v%d, s[8:11], s34 offen lds" % (6 + (jj >> 1))])
        ops[-1] = ops[-1] + ["s_add_u32 s31, s31, %d" % (64*7168)]
        return ops
    def emit(groups):
        for g in groups:
            for x in g: A(x)
    emit(dmaB_ops(0)); emit(dmaA_ops())
    A("s_barrier")
    emit(dmaB_ops(1)); emit(dmaA_ops())

    if "ts2" in EXP: A("s_memtime s[86:87]\ns_waitcnt vmcnt(19)\ns_memtime s[88:89]\ns_waitcnt vmcnt(16)\ns_memtime s[90:91]")
    make_srd(A, 12, 28, 29, WS_HH, 2048*3584*2)
    A("v_lshrrev_b32 v24, 1, v21\nv_xor_b32 v24, v24, v20\nv_lshlrev_b32 v24, 4, v24\nv_lshl_add_u32 v24, v21, 7, v24")
    A("s_lshl_b32 s21, s19, 13\ns_add_u32 s21, s21, 65536")
    A("v_add_u32 v18, s21, v24")
    A("v_xor_b32 v19, 64, v18")
    A("v_mov_b32 v8, v18\nv_mov_b32 v9, v19")
    A("s_mov_b32 s38, 0\ns_mov_b32 s39, 0")
    A("v_lshrrev_b32 v24, 2, v21\nv_and_b32 v25, 3, v21\nv_and_b32 v26, 1, v20\nv_lshl_or_b32 v26, v26, 2, v24")
    A("v_lshl_add_u32 v27, v20, 3, v24")
    A("v_lshlrev_b32 v27, 8, v27\nv_lshl_add_u32 v27, v25, 3, v27")
    A("s_lshl_b32 s21, s20, 2")
    for slot in range(7):
        if slot < 3:
            A("s_add_u32 s22, s21, %d\ns_mov_b32 s23, 0" % slot)
        elif slot == 3:
            A("s_mov_b32 s22, 3\ns_lshl_b32 s23, s20, 14")
        else:
            A("s_add_u32 s22, s21, %d\ns_mov_b32 s23, 16384" % (slot-4))
        A("v_xor_b32 v24, s22, v26")
        A("v_lshl_add_u32 v24, v24, 5, v27")
        A("v_add_u32 v%d, s23, v24" % (10+slot))
    A("s_mov_b32 s40, %s\ns_mov_b32 s41, %s\ns_mov_b32 s42, 1.0\ns_mov_b32 s43, 1.0" % (LOG2E_NEG, LOG2E_NEG))

    PT, PW, QT, QW, ACC = 32, 48, 76, 92, 128
    def read_ops(setT, setW, buf, kk):
        ops = []
        if "nords" in EXP: return ops
        for tb in range(4):
            ops.append("ds_read_b128 %s, v%d offset:%d" % (vr(setT+4*tb), 8+kk, tb*2048))
        sreg = 38 + kk
        ops[-1] = ops[-1] + "\ns_add_u32 s%d, s%d, 32768\ns_cmp_ge_u32 s%d, 98304\ns_cselect_b32 s%d, 0, s%d\nv_add_u32 v%d, s%d, v%d" % (sreg, sreg, sreg, sreg, sreg, 8+kk, sreg, 18+kk)
        for slot in range(7):
            for h in range(2):
                ops.append("ds_read_b64_tr_b16 %s, v%d offset:%d" % (vr(setW+4*slot+2*h, 2), 10+slot, buf*32768 + (32*kk+4*h)*256))
        return ops
    def mfma_ops(setT, setW):
        ops = []
        for slot in range(7):
            for tb in range(4):
                a = ACC + (slot*4+tb)*4
                ops.append("v_mfma_f32_16x16x32_bf16 %s, %s, %s, %s" % (vr(a), vr(setW+4*slot), vr(setT+4*tb), vr(a)))
        return ops
    def interleave(mf, fill):
        for i, m in enumerate(mf):
            if "nomfma" not in EXP: A(m)
            for x in fill.get(i, []):
                A(x)

    for i in range(112):
        A("v_mov_b32 v%d, 0" % (ACC+i))
    A("s_waitcnt vmcnt(8)")
    A("s_barrier")
    if "ts" in EXP: A("s_memtime s[62:63]")
    for x in read_ops(PT, PW, 0, 0): A(x)

    def stage(buf, dmaB, dmaA, do_next, vm, extraA=False):
        A("s_waitcnt lgkmcnt(0)")
        rd = read_ops(QT, QW, buf, 1)
        fill = {}
        for i, r in enumerate(rd):
            fill.setdefault(i // 2, []).append(r)
        if extraA:
            for i, g in enumerate(dmaA_ops()):
                fill.setdefault(10 + 2*i, []).extend(g)
        interleave(mfma_ops(PT, PW), fill)
        A("s_waitcnt vmcnt(%d) lgkmcnt(0)" % vm)
        A("s_barrier")
        fill = {}
        rd = read_ops(PT, PW, buf ^ 1, 0) if do_next else []
        dB = dmaB_ops(buf) if (dmaB and "nodma" not in EXP) else []
        dA = dmaA_ops() if (dmaA and "nodma" not in EXP) else []
        gap = 0
        for g in dB:
            fill.setdefault(gap, []).extend(g); gap += 1
        for i, r in enumerate(rd):
            fill.setdefault(gap + i // 2, []).append(r)
        gap += (len(rd) + 1) // 2
        for g in dA:
            fill.setdefault(gap, []).extend(g); gap += 2
        interleave(mfma_ops(QT, QW), fill)

    stage(0, True, True, True, 4, True)
    stage(1, True, True, True, 4)
    A("s_mov_b32 s35, 0")
    A("%sloop:" % L)
    stage(0, True, True, True, 4)
    stage(1, True, True, True, 4)
    A("s_add_u32 s35, s35, 1")
    A("s_cmp_lt_u32 s35, 5")
    A("s_cbranch_scc1 %sloop" % L)
    stage(0, True, True, True, 4)
    stage(1, True, False, True, 4)
    stage(0, False, False, True, 0)
    stage(1, False, False, False, 0)

    if "ts" in EXP: A("s_memtime s[64:65]")
    make_srd(A, 48, 44, 45, 0, 3584*1024*2)
    A("v_lshlrev_b32 v24, 7, v0\nv_cmp_gt_u32 vcc, 224, v0\nv_mov_b32 v25, 0x80000000\ns_mul_i32 s21, s2, 28672\nv_cndmask_b32 v24, v25, v24, vcc")
    A("buffer_load_dword v30, v24, s[48:51], s21 offen")
    A("s_nop 3")
    A("v_lshlrev_b32 v24, 4, v2")
    A("s_lshl_b32 s21, s18, 11")
    A("v_add_u32 v25, s21, v24")
    A("s_xor_b32 s21, s18, 4\ns_lshl_b32 s21, s21, 11")
    A("v_add_u32 v26, s21, v24")
    s3 = ACC + 12*4
    A("s_cmp_eq_u32 s20, 0")
    A("s_cbranch_scc0 %sx1" % L)
    A("ds_write_b128 v25, %s" % vr(s3+8))
    A("ds_write_b128 v25, %s offset:1024" % vr(s3+12))
    A("s_branch %sx2" % L)
    A("%sx1:" % L)
    A("ds_write_b128 v25, %s" % vr(s3))
    A("ds_write_b128 v25, %s offset:1024" % vr(s3+4))
    A("%sx2:" % L)
    A("s_waitcnt lgkmcnt(0)")
    A("s_barrier")
    A("ds_read_b128 v[32:35], v26")
    A("ds_read_b128 v[36:39], v26 offset:1024")
    A("v_and_b32 v24, 1, v20\nv_lshl_add_u32 v24, v24, 4, v21\nv_lshlrev_b32 v24, 5, v24")
    A("v_lshrrev_b32 v25, 1, v20\nv_lshl_add_u32 v27, v25, 4, v24")
    A("s_mul_i32 s21, s17, 224\ns_mul_i32 s22, s16, 7\ns_add_u32 s21, s21, s22\ns_lshl_b32 s21, s21, 13")
    A("s_lshl_b32 s22, s19, 11\ns_add_u32 s21, s21, s22")
    A("s_lshl_b32 s22, s20, 15\ns_add_u32 s22, s22, s21")
    T = 40
    O = 60
    cnt = 0
    def pair(g0, u0, g1, u1, soff_expr):
        nonlocal cnt
        o = O + 4*(cnt % 4); t = T + 8*(cnt % 2); cnt += 1
        emit_swiglu(A, g0, u0, o, t)
        emit_swiglu(A, g1, u1, o+2, t+4)
        A(soff_expr)
        A("s_nop 0")
        A("v_permlane16_swap_b32 v%d, v%d" % (o, o+2))
        A("v_permlane16_swap_b32 v%d, v%d" % (o+1, o+3))
        A("buffer_store_dwordx4 %s, v27, s[12:15], s23 offen" % vr(o))
    for j in range(3):
        for tp in range(2):
            tb = 2*tp
            g = ACC + (j*4+tb)*4
            u = ACC + ((j+4)*4+tb)*4
            pair(g, u, g+4, u+4, "s_add_u32 s23, s22, %d" % (j*8192 + tb*512))
    A("s_waitcnt lgkmcnt(0)")
    A("s_cmp_eq_u32 s20, 0")
    A("s_cbranch_scc0 %sy1" % L)
    pair(s3, 32, s3+4, 36, "s_add_u32 s23, s21, %d" % (3*8192))
    A("s_branch %sfin" % L)
    A("%sy1:" % L)
    pair(32, s3+8, 36, s3+12, "s_add_u32 s23, s21, %d" % (3*8192 + 2*512))
    A("%sfin:" % L)
    if "ts" in EXP:
        A("s_memtime s[66:67]")
        A("s_waitcnt vmcnt(0)")
        A("s_memtime s[68:69]")
        A("s_memrealtime s[82:83]")
        A("s_waitcnt lgkmcnt(0)")
        A("s_sub_u32 s66, s82, s80\ns_add_u32 s66, s66, s60")
        A("s_sub_u32 s62, s62, s60\ns_sub_u32 s64, s64, s60\ns_sub_u32 s66, s66, s60\ns_sub_u32 s68, s68, s60")
        A("s_mov_b32 s72, s70\ns_mov_b32 s73, s71\ns_mov_b32 s74, 256\ns_mov_b32 s75, 0x00020000")
        if "ts2" in EXP: A("s_sub_u32 s62, s84, s60\ns_sub_u32 s64, s86, s60\ns_sub_u32 s66, s88, s60\ns_sub_u32 s68, s90, s60")
        A("v_mov_b32 v40, s62\nv_mov_b32 v41, s64\nv_mov_b32 v42, s66\nv_mov_b32 v43, s68")
        A("s_lshr_b32 s21, s2, 7\ns_lshl_b32 s21, s21, 3\ns_add_u32 s21, s21, s18\ns_lshl_b32 s21, s21, 4\nv_mov_b32 v44, s21")
        A("s_and_b32 s22, s2, 127\ns_cmp_eq_u32 s22, 5\ns_cbranch_scc0 %send" % L)
        A("v_cmp_eq_u32 vcc, 0, v2\ns_and_saveexec_b64 s[76:77], vcc")
        A("buffer_store_dwordx4 v[40:43], v44, s[72:75], 0 offen")
    A("%send:" % L)
    A("s_endpgm")
    return name
```

```python
from asmlib import *
import os
EXP = os.environ.get("EXP", "")
LDS = 131072
VGPR = 128
K0 = int(os.environ.get("K0", "26"))

def gen_gemm2(A, name="gemm2_kernel"):
    kernel_head(A, name)
    L = "Lg2_"
    A("s_cmp_ge_u32 s2, 256")
    A("s_cbranch_scc1 %send" % L)
    if "ts" in EXP: A("s_memtime s[60:61]\ns_memrealtime s[80:81]\ns_load_dwordx2 s[70:71], s[0:1], 104")
    A("s_load_dwordx2 s[24:25], s[0:1], 72")
    A("s_load_dwordx2 s[26:27], s[0:1], 96")
    A("s_load_dwordx2 s[28:29], s[0:1], 112")
    A("v_lshrrev_b32 v1, 6, v0")
    A("v_and_b32 v2, 63, v0")
    A("v_readfirstlane_b32 s18, v1")
    A("s_and_b32 s21, s2, 7\ns_lshr_b32 s22, s2, 3")
    A("s_and_b32 s44, s22, 1")
    A("s_lshr_b32 s22, s22, 1")
    A("s_lshr_b32 s16, s21, 1\ns_lshl_b32 s16, s16, 2\ns_lshr_b32 s23, s22, 2\ns_add_u32 s16, s16, s23")
    A("s_and_b32 s17, s21, 1\ns_lshl_b32 s17, s17, 2\ns_and_b32 s23, s22, 3\ns_add_u32 s17, s17, s23")
    A("s_lshl_b32 s45, s16, 3\ns_add_u32 s45, s45, s17")
    A("s_and_b32 s19, s18, 1")
    A("s_lshr_b32 s20, s18, 1")
    A("s_cmp_eq_u32 s44, 0")
    A("s_cselect_b32 s46, %d, %d" % (K0, 56-K0))
    A("s_cselect_b32 s47, 0, %d" % K0)
    A("v_lshrrev_b32 v20, 4, v2")
    A("v_and_b32 v21, 15, v2")
    A("v_lshrrev_b32 v22, 3, v2")
    A("v_and_b32 v23, 7, v2")
    for (dst, fx) in ((4, 0), (5, 4)):
        A("v_xor_b32 v24, v23, v20")
        if fx: A("v_xor_b32 v24, 4, v24")
        A("v_lshrrev_b32 v25, 1, v24\nv_and_b32 v24, 1, v24")
        A("v_lshlrev_b32 v25, 13, v25\nv_lshl_add_u32 v25, v22, 5, v25\nv_lshl_add_u32 v%d, v24, 4, v25" % dst)
    A("s_lshl_b32 s21, s19, 2")
    A("v_or_b32 v24, s21, v20")
    A("v_lshrrev_b32 v25, 1, v21\nv_xor_b32 v24, v24, v25\nv_and_b32 v25, 1, v21")
    A("v_lshlrev_b32 v24, 5, v24\nv_lshl_add_u32 v24, v25, 4, v24\nv_lshl_add_u32 v6, v20, 11, v24")
    A("s_lshr_b32 s21, s16, 1\ns_mul_i32 s21, s21, 224\ns_lshl_b32 s22, s47, 2\ns_add_u32 s21, s21, s22\ns_lshl_b32 s30, s21, 13")
    A("s_and_b32 s21, s16, 1\ns_lshl_b32 s21, s21, 12\ns_add_u32 s30, s30, s21\ns_lshl_b32 s21, s18, 9\ns_add_u32 s30, s30, s21")
    A("s_lshl_b32 s21, s47, 17\ns_lshl_b32 s22, s18, 14\ns_add_u32 s31, s21, s22\ns_lshl_b32 s21, s17, 8\ns_add_u32 s31, s31, s21")
    A("s_lshl_b32 s33, s18, 11")
    A("s_mov_b32 s32, 0")
    A("s_mov_b32 s48, 0")
    A("s_waitcnt lgkmcnt(0)")
    make_srd(A, 4, 28, 29, WS_HH, 2048*3584*2)
    make_srd(A, 8, 24, 25, 0, 3584*1024*2)

    def dma_ops():
        ops = []
        pre = ["s_cmp_lt_u32 s48, s46", "s_cselect_b32 s36, s30, 0x80000000", "s_cselect_b32 s37, s31, 0x80000000", "s_add_u32 s49, s33, s32"]
        ops.append(pre + ["s_add_u32 m0, s49, 65536", "s_nop 0", "buffer_load_dwordx4 v4, s[4:7], s36 offen lds"])
        ops.append(["s_add_u32 m0, s49, %d" % (65536+1024), "s_add_u32 s34, s36, 256", "buffer_load_dwordx4 v5, s[4:7], s34 offen lds"])
        ops.append(["s_add_u32 m0, s49, 0", "s_nop 0", "buffer_load_dwordx4 v6, s[8:11], s37 offen lds"])
        ops.append(["s_add_u32 m0, s49, 1024", "s_add_u32 s34, s37, 8192", "buffer_load_dwordx4 v6, s[8:11], s34 offen lds",
                    "s_add_u32 s30, s30, 32768", "s_add_u32 s31, s31, %d" % (64*2048), "s_add_u32 s48, s48, 1",
                    "s_add_u32 s32, s32, 16384", "s_and_b32 s32, s32, 0xffff"])
        return ops
    def emit(groups):
        for g in groups:
            for x in g: A(x)
    emit(dma_ops())
    A("s_barrier")
    emit(dma_ops()); emit(dma_ops()); emit(dma_ops())

    A("v_lshrrev_b32 v24, 1, v21\nv_xor_b32 v24, v24, v20\nv_lshlrev_b32 v24, 4, v24\nv_lshl_add_u32 v24, v21, 7, v24")
    A("s_lshl_b32 s21, s19, 13\ns_add_u32 s21, s21, 65536")
    A("v_add_u32 v14, s21, v24")
    A("v_xor_b32 v15, 64, v14")
    A("v_lshrrev_b32 v24, 2, v21\nv_and_b32 v25, 3, v21\nv_and_b32 v26, 1, v20\nv_lshl_or_b32 v26, v26, 2, v24")
    A("v_lshl_add_u32 v27, v20, 3, v24")
    A("v_lshlrev_b32 v27, 8, v27\nv_lshl_add_u32 v27, v25, 3, v27")
    A("s_lshl_b32 s21, s20, 1")
    for j in range(2):
        A("s_add_u32 s22, s21, %d" % j)
        A("v_xor_b32 v24, s22, v26")
        A("v_lshl_add_u32 v%d, v24, 5, v27" % (16+j))
    A("s_mov_b32 s38, 0\ns_mov_b32 s39, 0")
    PT, PW, QT, QW, ACC = 32, 48, 56, 72, 96
    def read_ops(setT, setW, kk):
        sreg = 38 + kk
        vt = 8 + kk; vw = 10 + 2*kk
        ops = []
        pre = "v_add_u32 v%d, s%d, v%d\nv_add_u32 v%d, s%d, v16\nv_add_u32 v%d, s%d, v17\n" % (vt, sreg, 14+kk, vw, sreg, vw+1, sreg)
        pre += "s_add_u32 s%d, s%d, 16384\ns_and_b32 s%d, s%d, 0xffff\n" % (sreg, sreg, sreg, sreg)
        for tb in range(4):
            ops.append((pre if tb == 0 else "") + "ds_read_b128 %s, v%d offset:%d" % (vr(setT+4*tb), vt, tb*2048))
        for j in range(2):
            for h in range(2):
                ops.append("ds_read_b64_tr_b16 %s, v%d offset:%d" % (vr(setW+4*j+2*h, 2), vw+j, (32*kk+4*h)*256))
        return ops
    def mfma_ops(setT, setW):
        ops = []
        for j in range(2):
            for tb in range(4):
                a = ACC + (j*4+tb)*4
                ops.append("v_mfma_f32_16x16x32_bf16 %s, %s, %s, %s" % (vr(a), vr(setW+4*j), vr(setT+4*tb), vr(a)))
        return ops
    def interleave(mf, fill):
        for i, m in enumerate(mf):
            A(m)
            for x in fill.get(i, []):
                A(x)
    for i in range(32):
        A("v_mov_b32 v%d, 0" % (ACC+i))
    A("s_waitcnt vmcnt(12)")
    A("s_barrier")
    if "ts" in EXP: A("s_memtime s[62:63]")
    for x in read_ops(PT, PW, 0): A(x)
    A("s_mov_b32 s35, 0")
    A("%sloop:" % L)
    A("s_waitcnt lgkmcnt(0)")
    rd = read_ops(QT, QW, 1)
    fill = {}
    for i, r in enumerate(rd):
        fill.setdefault(i // 2, []).append(r)
    interleave(mfma_ops(PT, PW), fill)
    A("s_waitcnt vmcnt(8) lgkmcnt(0)")
    A("s_barrier")
    fill = {}
    rd = read_ops(PT, PW, 0)
    for i, r in enumerate(rd):
        fill.setdefault(i // 2, []).append(r)
    for i, g in enumerate(dma_ops()):
        fill.setdefault(4 + i, []).extend(g)
    interleave(mfma_ops(QT, QW), fill)
    A("s_add_u32 s35, s35, 1")
    A("s_cmp_lt_u32 s35, s46")
    A("s_cbranch_scc1 %sloop" % L)
    if "ts" in EXP: A("s_memtime s[64:65]")
    A("s_waitcnt vmcnt(0) lgkmcnt(0)")
    make_srd(A, 12, 28, 29, WS_PART, 128*65536)
    make_srd(A, 52, 28, 29, WS_FLAG, 128*128)
    A("v_lshlrev_b32 v24, 4, v2")
    A("s_lshl_b32 s21, s45, 16\ns_lshl_b32 s22, s18, 13\ns_add_u32 s21, s21, s22")
    A("s_lshl_b32 s22, s45, 7")
    A("v_mov_b32 v25, 0")
    A("s_cmp_eq_u32 s44, 0")
    A("s_cbranch_scc0 %slate" % L)
    for i in range(8):
        A("s_add_u32 s23, s21, %d" % (i*1024))
        A("buffer_store_dwordx4 %s, v24, s[12:15], s23 offen sc0 sc1" % vr(ACC+4*i))
    A("s_waitcnt vmcnt(0)")
    A("s_barrier")
    A("s_cmp_eq_u32 s18, 0")
    A("s_cbranch_scc0 %sfin" % L)
    A("v_mov_b32 v26, 1")
    A("v_cmp_eq_u32 vcc, 0, v2")
    A("s_and_saveexec_b64 s[56:57], vcc")
    A("buffer_store_dword v26, v25, s[52:55], s22 offen sc0 sc1")
    A("s_waitcnt vmcnt(0)")
    A("s_mov_b64 exec, s[56:57]")
    A("s_branch %sfin" % L)
    A("%slate:" % L)
    make_srd(A, 4, 28, 29, WS_X1, 2048*1024*2)
    make_srd(A, 8, 28, 29, WS_MOD + 5*4096, 24576+4096)
    A("s_mov_b32 s58, s26\ns_mov_b32 s59, s27")
    A("s_lshl_b32 s23, s17, 9\ns_lshl_b32 s34, s20, 7\ns_add_u32 s23, s23, s34")
    A("v_lshlrev_b32 v26, 4, v20")
    A("buffer_load_dwordx4 v[32:35], v26, s[8:11], s23 offen")
    A("buffer_load_dwordx4 v[36:39], v26, s[8:11], s23 offen offset:64")
    A("s_add_u32 s23, s23, 24576")
    A("buffer_load_dwordx4 v[64:67], v26, s[8:11], s23 offen")
    A("buffer_load_dwordx4 v[68:71], v26, s[8:11], s23 offen offset:64")
    A("v_and_b32 v26, 1, v20\nv_lshl_add_u32 v26, v26, 4, v21\nv_lshlrev_b32 v26, 11, v26")
    A("v_lshrrev_b32 v27, 1, v20\nv_lshl_add_u32 v27, v27, 4, v26")
    A("s_lshl_b32 s23, s16, 18\ns_lshl_b32 s34, s19, 17\ns_add_u32 s23, s23, s34\ns_lshl_b32 s34, s17, 8\ns_add_u32 s23, s23, s34\ns_lshl_b32 s34, s20, 6\ns_add_u32 s50, s23, s34")
    XR = 40
    idx = 0
    for j in range(2):
        for tp in range(2):
            A("s_add_u32 s23, s50, %d" % (tp*32*2048))
            A("buffer_load_dwordx4 %s, v27, s[4:7], s23 offen offset:%d" % (vr(XR+4*idx), j*32))
            idx += 1
    A("%spoll:" % L)
    A("buffer_load_dword v28, v25, s[52:55], s22 offen sc0 sc1")
    A("s_waitcnt vmcnt(0)")
    A("v_readfirstlane_b32 s34, v28")
    A("s_cmp_eq_u32 s34, 1")
    A("s_cbranch_scc1 %sgot" % L)
    A("s_sleep 2")
    A("s_branch %spoll" % L)
    A("%sgot:" % L)
    for r in range(8): A("v_add_f32 v%d, v%d, v%d" % (32+r, 32+r, 64+r))
    for r in range(0, 8, 2): rnd2(A, 32+r, 33+r, 28)
    PR = 64
    for i in range(8):
        A("s_add_u32 s23, s21, %d" % (i*1024))
        A("buffer_load_dwordx4 %s, v24, s[12:15], s23 offen sc0 sc1" % vr(PR+4*i))
    make_srd(A, 12, 58, 59, 0, 2048*1024*2)
    idx = 0
    for j in range(2):
        for tp in range(2):
            o = 56 + 4*(idx % 2)
            for t in range(2):
                tb = 2*tp + t
                a = ACC + (j*4+tb)*4
                p = PR + (j*4+tb)*4
                A("s_waitcnt vmcnt(%d)" % (7 - (j*4+tb) + (idx if False else 0) + 0) if False else "s_waitcnt vmcnt(%d)" % (7 - (j*4+tb) + idx))
                for r in range(4):
                    A("v_add_f32 v%d, v%d, v%d" % (a+r, a+r, p+r))
                A("v_cvt_pk_bf16_f32 v%d, v%d, v%d" % (p, a, a+1))
                A("v_cvt_pk_bf16_f32 v%d, v%d, v%d" % (p+1, a+2, a+3))
                A("v_lshlrev_b32 v%d, 16, v%d\nv_and_b32 v%d, 0xffff0000, v%d" % (a, p, a+1, p))
                A("v_lshlrev_b32 v%d, 16, v%d\nv_and_b32 v%d, 0xffff0000, v%d" % (a+2, p+1, a+3, p+1))
                for r in range(4):
                    A("v_mul_f32 v%d, v%d, v%d" % (a+r, a+r, 32+4*j+r))
                A("v_cvt_pk_bf16_f32 v%d, v%d, v%d" % (o+2*t, a, a+1))
                A("v_cvt_pk_bf16_f32 v%d, v%d, v%d" % (o+2*t+1, a+2, a+3))
            A("s_nop 1")
            A("v_permlane16_swap_b32 v%d, v%d" % (o, o+2))
            A("v_permlane16_swap_b32 v%d, v%d" % (o+1, o+3))
            x = XR + 4*idx
            a = ACC + (j*4+2*tp)*4
            for d in range(4):
                A("v_lshlrev_b32 v%d, 16, v%d\nv_and_b32 v%d, 0xffff0000, v%d" % (a+2*d, o+d, a+2*d+1, o+d))
                A("v_lshlrev_b32 v%d, 16, v%d\nv_and_b32 v%d, 0xffff0000, v%d" % (28, x+d, 29, x+d))
                A("v_add_f32 v%d, v%d, v28\nv_add_f32 v%d, v%d, v29" % (a+2*d, a+2*d, a+2*d+1, a+2*d+1))
                A("v_cvt_pk_bf16_f32 v%d, v%d, v%d" % (x+d, a+2*d, a+2*d+1))
            A("s_add_u32 s23, s50, %d" % (tp*32*2048))
            A("buffer_store_dwordx4 %s, v27, s[12:15], s23 offen offset:%d" % (vr(x), j*32))
            idx += 1
    A("%sfin:" % L)
    if "ts" in EXP:
        A("s_waitcnt vmcnt(0)")
        A("s_memtime s[68:69]")
        A("s_memrealtime s[82:83]")
        A("s_waitcnt lgkmcnt(0)")
        A("s_sub_u32 s66, s82, s80")
        A("s_sub_u32 s62, s62, s60\ns_sub_u32 s64, s64, s60\ns_sub_u32 s68, s68, s60")
        A("s_mov_b32 s72, s70\ns_mov_b32 s73, s71\ns_mov_b32 s74, 256\ns_mov_b32 s75, 0x00020000")
        A("v_mov_b32 v40, s62\nv_mov_b32 v41, s64\nv_mov_b32 v42, s66\nv_mov_b32 v43, s68")
        A("s_lshl_b32 s21, s44, 3\ns_add_u32 s21, s21, s18\ns_lshl_b32 s21, s21, 4\nv_mov_b32 v44, s21")
        A("s_cmp_eq_u32 s45, 5\ns_cbranch_scc0 %send" % L)
        A("v_cmp_eq_u32 vcc, 0, v2\ns_and_saveexec_b64 s[76:77], vcc")
        A("buffer_store_dwordx4 v[40:43], v44, s[72:75], 0 offen")
    A("%send:" % L)
    A("s_endpgm")
    return name
```

```python
from asmlib import *
import os
EXP = os.environ.get("EXP", "")
GRID = 256
BLOCK = 320
KPF = int(os.environ.get("KPF", "2"))
STR = 272
LDS = 64*STR
VGPR = 168
LOG2E_NEG = "0xbfb8aa3b"

def pk(A, op, d, a, b):
    A("v_pk_%s_f32 %s, %s, %s" % (op, vr(d, 2), vr(a, 2), vr(b, 2)))

def gen_kvt(A, name="kvt_kernel"):
    kernel_head(A, name)
    L = "Lkv_"
    A("s_cmp_ge_u32 s2, %d" % GRID)
    A("s_cbranch_scc1 %send" % L)
    ts_begin(A)
    A("v_lshrrev_b32 v1, 6, v0")
    A("s_load_dwordx2 s[34:35], s[0:1], 112")
    A("v_readfirstlane_b32 s18, v1")
    A("s_nop 3")
    A("s_cmp_eq_u32 s18, 4")
    A("s_cbranch_scc1 %spf" % L)
    A("s_load_dwordx4 s[24:27], s[0:1], 8")
    A("s_load_dwordx2 s[28:29], s[0:1], 24")
    A("s_and_b32 s16, s2, 15")
    A("s_lshr_b32 s17, s2, 4")
    A("v_lshrrev_b32 v1, 3, v0")
    A("v_and_b32 v2, 7, v0")
    A("s_lshl_b32 s18, s17, 18\ns_lshl_b32 s19, s16, 7\ns_add_u32 s18, s18, s19")
    A("v_lshlrev_b32 v3, 13, v1\nv_lshl_add_u32 v3, v2, 4, v3\nv_add_u32 v3, s18, v3")
    A("v_subrev_u32 v4, 6144, v3\nv_subrev_u32 v5, 4096, v3\nv_subrev_u32 v6, 2048, v3")
    A("v_lshlrev_b32 v7, 6, v2\ns_lshl_b32 s19, s16, 9\nv_add_u32 v7, s19, v7")
    A("s_waitcnt lgkmcnt(0)")
    make_srd(A, 4, 24, 25, 0, 2048*1024*2)
    make_srd(A, 8, 26, 27, 0, 2048*1024*2)
    make_srd(A, 12, 28, 29, 0, 1024*8)
    make_srd(A, 20, 34, 35, WS_URT, 1024*2048*2)
    TW, KR, VR = 16, 32, 60
    for q in range(4):
        A("buffer_load_dwordx4 %s, v7, s[12:15], 0 offen offset:%d" % (vr(TW+4*q), 16*q))
    for i in range(3):
        A("buffer_load_dwordx4 %s, v%d, s[4:7], 0 offen" % (vr(KR+4*i), 4+i))
    for i in range(4):
        A("s_movk_i32 s19, %d" % (i*2048))
        A("buffer_load_dwordx4 %s, v3, s[4:7], s19 offen" % vr(KR+12+4*i))
        A("buffer_load_dwordx4 %s, v3, s[8:11], s19 offen" % vr(VR+4*i))
    TF = 80
    KF = 112
    A("s_waitcnt vmcnt(11)")
    for c in range(8):
        A("v_lshlrev_b32 v%d, 16, v%d\nv_and_b32 v%d, 0xffff0000, v%d" % (TF+c, TW+2*c, TF+8+c, TW+2*c))
        A("v_lshlrev_b32 v%d, 16, v%d\nv_and_b32 v%d, 0xffff0000, v%d" % (TF+16+c, TW+2*c+1, TF+24+c, TW+2*c+1))
    def unpk(i):
        for q in range(4):
            unpack2(A, KF+8*i+2*q, KF+8*i+2*q+1, KR+4*i+q)
    RES = 16
    for j in range(4):
        A("s_waitcnt vmcnt(%d)" % (6 - 2*j))
        if j == 0:
            for i in range(4): unpk(i)
        else:
            unpk(j+3)
    A("s_barrier")
    ts(A, 0)
    for j in range(4):
        for cp in range(4):
            c0 = 2*cp
            a = RES + 8*j + c0
            t = 8 + 4*(cp & 1)
            pk(A, "mul", a, TF+24+c0, KF+8*j+c0)
            rnd2(A, a, a+1, t)
            for tap in range(1, 4):
                pk(A, "mul", t+2, TF+8*(3-tap)+c0, KF+8*(j+tap)+c0)
                rnd2(A, t+2, t+3, t)
                pk(A, "add", a, a, t+2)
                rnd2(A, a, a+1, t)
            unpack2(A, t+2, t+3, VR+4*j+cp)
            pk(A, "mul", a, a, t+2)
    A("v_mul_u32_u24 v8, %d, v2\nv_lshlrev_b32 v9, 3, v1\nv_sub_u32 v8, v8, v9\nv_add_u32 v8, 248, v8" % (8*STR))
    for c in range(8):
        A("v_cvt_pk_bf16_f32 v%d, v%d, v%d" % (48+2*c, RES+24+c, RES+16+c))
        A("v_cvt_pk_bf16_f32 v%d, v%d, v%d" % (49+2*c, RES+8+c, RES+c))
        A("ds_write_b64 v8, %s offset:%d" % (vr(48+2*c, 2), c*STR))
    A("s_waitcnt lgkmcnt(0)")
    A("s_barrier")
    ts(A, 1)
    A("v_lshrrev_b32 v8, 4, v0\nv_and_b32 v9, 15, v0")
    A("v_mul_u32_u24 v10, %d, v8\nv_lshl_add_u32 v10, v9, 4, v10" % STR)
    for it in range(4):
        A("ds_read_b128 %s, v10 offset:%d" % (vr(16+4*it), it*16*STR))
    A("v_lshlrev_b32 v11, 12, v8\nv_lshl_add_u32 v11, v9, 4, v11")
    A("s_lshl_b32 s18, s16, 18\ns_lshl_b32 s19, s17, 8\ns_sub_u32 s18, s18, s19\ns_add_u32 s18, s18, 3840")
    for it in range(4):
        A("s_waitcnt lgkmcnt(%d)" % (3-it))
        A("s_add_u32 s19, s18, %d" % (it*16*4096))
        A("buffer_store_dwordx4 %s, v11, s[20:23], s19 offen" % vr(16+4*it))
    ts_dump(A, 2, L+"end")
    A("s_endpgm")
    A("%spf:" % L)
    A("s_load_dwordx2 s[24:25], s[0:1], 32")
    A("s_load_dwordx4 s[44:47], s[0:1], 56")
    A("v_and_b32 v2, 63, v0\nv_lshlrev_b32 v3, 7, v2\ns_lshl_b32 s19, s2, 14")
    A("v_mul_u32_u24 v10, 9363, v2\nv_lshrrev_b32 v10, 16, v10")
    A("v_mul_u32_u24 v11, 7, v10\nv_sub_u32 v11, v2, v11")
    A("s_movk_i32 s20, 7168\nv_mul_lo_u32 v10, v10, s20\nv_lshl_add_u32 v10, v11, 7, v10")
    A("v_cmp_gt_u32 vcc, 56, v2\nv_mov_b32 v11, 0x80000000\ns_nop 1\nv_cndmask_b32 v10, v11, v10, vcc")
    A("s_and_b32 s43, s2, 7\ns_mul_i32 s43, s43, 896\ns_lshr_b32 s42, s2, 3\ns_mul_i32 s42, s42, %d\ns_add_u32 s43, s43, s42\ns_add_u32 s43, s43, %d" % (8*7168, 512*7168))
    A("s_waitcnt lgkmcnt(0)")
    make_srd(A, 4, 24, 25, 0, 1024*2048*2)
    make_srd(A, 48, 44, 45, 0, 1024*3584*2)
    make_srd(A, 52, 46, 47, 0, 1024*3584*2)
    A("s_barrier")
    A("buffer_load_dword v4, v3, s[4:7], s19 offen")
    A("s_add_u32 s19, s19, 8192")
    A("buffer_load_dword v5, v3, s[4:7], s19 offen")
    for it in range(KPF):
        A("buffer_load_dword v%d, v10, s[48:51], s43 offen" % (20+2*it))
        A("buffer_load_dword v%d, v10, s[52:55], s43 offen" % (21+2*it))
        A("s_add_u32 s43, s43, %d" % (256*7168))
    A("s_barrier")
    A("%send:" % L)
    A("s_endpgm")
    return name
```

```python
from asmlib import *
import os
EXP = os.environ.get("EXP", "")
YL = 0
YLS = 2064
ML = 8*YLS
LDS = ML + 5*4096
VGPR = 168
BLOCK = 576
NPF = int(os.environ.get("NPF", "2"))

def pk(A, op, d, a, b, mod=""):
    A("v_pk_%s_f32 %s, %s, %s%s" % (op, vr(d, 2), vr(a, 2), b if isinstance(b, str) else vr(b, 2), mod))

def gen_ln(A, name="ln_kernel"):
    kernel_head(A, name)
    L = "Lln_"
    A("s_cmp_ge_u32 s2, 256")
    A("s_cbranch_scc1 %send" % L)
    ts_begin(A)
    A("s_load_dwordx2 s[24:25], s[0:1], 0")
    A("s_load_dwordx2 s[34:35], s[0:1], 112")
    A("v_lshrrev_b32 v1, 6, v0")
    A("v_and_b32 v2, 63, v0")
    A("v_readfirstlane_b32 s18, v1")
    A("v_lshlrev_b32 v3, 5, v2")
    A("v_lshlrev_b32 v4, 5, v0")
    A("v_lshlrev_b32 v5, 3, v0")
    A("s_cmp_eq_u32 s18, 8")
    A("s_cbranch_scc1 %spf" % L)
    A("s_lshl_b32 s16, s2, 14")
    A("s_lshl_b32 s17, s18, 11\ns_add_u32 s17, s17, s16")
    A("s_waitcnt lgkmcnt(0)")
    make_srd(A, 4, 24, 25, 0, 2048*1024*2)
    make_srd(A, 8, 34, 35, WS_YT, 1024*2048*2)
    make_srd(A, 12, 34, 35, WS_MOD, 2*6144*4)
    make_srd(A, 20, 34, 35, WS_X1, 2048*1024*2)
    make_srd(A, 28, 34, 35, WS_H2, 2048*1024*2)
    XR, YR, MR, M2 = 16, 24, 32, 42
    for c in range(2):
        A("buffer_load_dwordx4 %s, v4, s[8:11], s16 offen offset:%d" % (vr(YR+4*c), 16*c))
    for j in range(5):
        A("s_movk_i32 s19, %d" % (j*4096))
        A("buffer_load_dwordx2 %s, v5, s[12:15], s19 offen" % vr(MR+2*j, 2))
        A("s_add_u32 s19, s19, 24576")
        A("buffer_load_dwordx2 %s, v5, s[12:15], s19 offen" % vr(M2+2*j, 2))
    for c in range(2):
        A("buffer_load_dwordx4 %s, v3, s[4:7], s17 offen offset:%d" % (vr(XR+4*c), 16*c))
    A("v_lshlrev_b32 v6, 2, v0")
    A("s_mov_b32 s40, 0x05040100\ns_mov_b32 s41, 0x07060302")
    A("s_waitcnt vmcnt(12)")
    for i in range(8):
        A("v_perm_b32 v%d, v%d, v%d, s%d" % (52+i, YR+4+i//2, YR+i//2, 40 + (i & 1)))
        A("ds_write_b32 v6, v%d offset:%d" % (52+i, YL + i*YLS))
    A("s_waitcnt vmcnt(2)")
    for j in range(5): pk(A, "add", MR+2*j, MR+2*j, M2+2*j)
    for j in range(5): rnd2(A, MR+2*j, MR+2*j+1, 60+j)
    for j in (1, 4):
        A("v_add_f32 v%d, 1.0, v%d\nv_add_f32 v%d, 1.0, v%d" % (MR+2*j, MR+2*j, MR+2*j+1, MR+2*j+1))
        rnd2(A, MR+2*j, MR+2*j+1, 60+j)
    for j in range(5):
        A("ds_write_b64 v5, %s offset:%d" % (vr(MR+2*j, 2), ML + j*4096))
    X = 56
    H = 72
    M = 88
    T = 8
    A("s_waitcnt vmcnt(0)")
    ts(A, 0)
    for q in range(8): unpack2(A, X+2*q, X+2*q+1, XR+q)
    def wave_sum(r):
        for step in ("row_ror:1", "row_ror:2", "row_ror:4", "row_ror:8"):
            A("s_nop 1")
            A("v_add_f32_dpp v%d, v%d, v%d %s row_mask:0xf bank_mask:0xf" % (r, r, r, step))
        A("s_nop 1")
        A("v_add_f32_dpp v%d, v%d, v%d row_bcast:15 row_mask:0xa bank_mask:0xf" % (r, r, r))
        A("s_nop 1")
        A("v_add_f32_dpp v%d, v%d, v%d row_bcast:31 row_mask:0xc bank_mask:0xf" % (r, r, r))
        A("s_nop 0")
        A("v_readlane_b32 s44, v%d, 63" % r)
    def stats():
        pk(A, "add", T, X, X+2)
        pk(A, "add", T+2, X+4, X+6)
        pk(A, "add", T+4, X+8, X+10)
        pk(A, "add", T+6, X+12, X+14)
        pk(A, "add", T, T, T+2); pk(A, "add", T+4, T+4, T+6); pk(A, "add", T, T, T+4)
        A("v_add_f32 v%d, v%d, v%d" % (T, T, T+1))
        wave_sum(T)
        A("s_nop 1")
        A("v_mov_b32 v%d, 0x3a800000" % (T+1))
        A("v_mul_f32 v%d, s44, v%d" % (T+2, T+1))
        A("v_mov_b32 v%d, v%d" % (T+3, T+2))
        for q in range(8): pk(A, "add", H+2*q, X+2*q, T+2, " neg_lo:[0,1] neg_hi:[0,1]")
        pk(A, "mul", T+4, H, H)
        pk(A, "mul", T+6, H+2, H+2)
        for q in range(2, 8): A("v_pk_fma_f32 %s, %s, %s, %s" % (vr(T+4+2*(q & 1), 2), vr(H+2*q, 2), vr(H+2*q, 2), vr(T+4+2*(q & 1), 2)))
        pk(A, "add", T+4, T+4, T+6)
        A("v_add_f32 v%d, v%d, v%d" % (T+4, T+4, T+5))
        wave_sum(T+4)
        A("s_nop 1")
        A("v_mul_f32 v%d, s44, v%d" % (T+4, T+1))
        rnd2(A, T+4, T+2, T+5)
        A("v_add_f32 v%d, 0x3727c5ac, v%d" % (T+4, T+4))
        rnd2(A, T+4, T+5, T+6)
        A("v_sqrt_f32 v%d, v%d" % (T+4, T+4))
        A("s_nop 0")
        rnd2(A, T+4, T+5, T+6)
        A("v_rcp_f32 v%d, v%d" % (T+4, T+4))
        A("v_mov_b32 v%d, v%d" % (T+3, T+2))
        A("v_mov_b32 v%d, v%d" % (T+5, T+4))
    def apply(scale, shift, final_pack=None):
        for q in range(8):
            d = H + 2*q
            pk(A, "add", d, X+2*q, T+2, " neg_lo:[0,1] neg_hi:[0,1]")
            rnd2(A, d, d+1, T)
            pk(A, "mul", d, d, T+4)
            rnd2(A, d, d+1, T)
            pk(A, "mul", d, d, M+16*scale+2*q)
            rnd2(A, d, d+1, T)
            pk(A, "add", d, d, M+16*shift+2*q)
            if final_pack is None: rnd2(A, d, d+1, T)
            else: A("v_cvt_pk_bf16_f32 v%d, v%d, v%d" % (final_pack+q, d, d+1))
    stats()
    A("s_waitcnt lgkmcnt(0)")
    A("s_barrier")
    ts(A, 1)
    A("s_mul_i32 s19, s18, %d" % YLS)
    A("v_add_u32 v6, s19, v3")
    A("v_lshlrev_b32 v7, 6, v2")
    for j in (1, 0):
        for q in range(4):
            A("ds_read_b128 %s, v7 offset:%d" % (vr(M+16*j+4*q), ML + j*4096 + 16*q))
    A("ds_read_b128 %s, v6 offset:%d" % (vr(YR), YL))
    A("ds_read_b128 %s, v6 offset:%d" % (vr(YR+4), YL+16))
    for j in (2, 4, 3):
        for q in range(4):
            A("ds_read_b128 %s, v7 offset:%d" % (vr(M+16*j+4*q), ML + j*4096 + 16*q))
    A("s_waitcnt lgkmcnt(14)")
    apply(1, 0)
    A("s_waitcnt lgkmcnt(8)")
    ts(A, 2)
    for q in range(8):
        d = H + 2*q
        unpack2(A, T+2, T+3, YR+q)
        pk(A, "mul", d, d, T+2)
        rnd2(A, d, d+1, T)
        pk(A, "mul", d, d, M+32+2*q)
        rnd2(A, d, d+1, T)
        pk(A, "add", X+2*q, X+2*q, d)
        A("v_cvt_pk_bf16_f32 v%d, v%d, v%d" % (XR+q, X+2*q, X+2*q+1))
        unpack2(A, X+2*q, X+2*q+1, XR+q)
    for c in range(2):
        A("buffer_store_dwordx4 %s, v3, s[20:23], s17 offen offset:%d" % (vr(XR+4*c), 16*c))
    ts(A, 3)
    stats()
    A("s_waitcnt lgkmcnt(0)")
    apply(4, 3, YR)
    for c in range(2):
        A("buffer_store_dwordx4 %s, v3, s[28:31], s17 offen offset:%d" % (vr(YR+4*c), 16*c))
    ts(A, 4)
    ts_dump(A, 5, L+"end")
    A("s_endpgm")
    A("%spf:" % L)
    A("s_load_dwordx4 s[44:47], s[0:1], 56")
    A("s_waitcnt lgkmcnt(0)")
    make_srd(A, 36, 34, 35, WS_FLAG, 128*128)
    make_srd(A, 48, 44, 45, 0, 1024*3584*2)
    make_srd(A, 52, 46, 47, 0, 1024*3584*2)
    A("v_mov_b32 v6, 0\nv_lshlrev_b32 v7, 10, v2\ns_lshl_b32 s19, s2, 7")
    A("v_cmp_eq_u32 vcc, 0, v2\ns_and_saveexec_b64 s[40:41], vcc")
    A("buffer_store_dword v6, v7, s[36:39], s19 offen")
    A("s_mov_b64 exec, s[40:41]")
    A("v_mul_u32_u24 v10, 9363, v2\nv_lshrrev_b32 v10, 16, v10")
    A("v_mul_u32_u24 v11, 7, v10\nv_sub_u32 v11, v2, v11")
    A("s_movk_i32 s19, 7168\nv_mul_lo_u32 v10, v10, s19\nv_lshl_add_u32 v10, v11, 7, v10")
    A("v_cmp_gt_u32 vcc, 56, v2\nv_mov_b32 v11, 0x80000000\ns_nop 1\nv_cndmask_b32 v10, v11, v10, vcc")
    A("s_and_b32 s43, s2, 7\ns_mul_i32 s43, s43, 896\ns_lshr_b32 s42, s2, 3\ns_mul_i32 s42, s42, %d\ns_add_u32 s43, s43, s42" % (8*7168))
    A("s_barrier")
    for it in range(NPF):
        A("buffer_load_dword v%d, v10, s[48:51], s43 offen" % (20+2*it))
        A("buffer_load_dword v%d, v10, s[52:55], s43 offen" % (21+2*it))
        A("s_add_u32 s43, s43, %d" % (256*7168))
    A("%send:" % L)
    A("s_endpgm")
    return name
```

```python
from asmlib import *
import os
EXP = os.environ.get("EXP", "")
LOG2E_NEG = "0xbfb8aa3b"
LDS = 163840
VGPR = 240

def emit_swiglu(A, g, u, out, t):
    rnd2(A, g, g+1, t); rnd2(A, g+2, g+3, t+1)
    rnd2(A, u, u+1, t+2); rnd2(A, u+2, u+3, t+3)
    A("v_pk_mul_f32 %s, %s, s[40:41]" % (vr(t, 2), vr(g, 2)))
    A("v_pk_mul_f32 %s, %s, s[40:41]" % (vr(t+2, 2), vr(g+2, 2)))
    for i in range(4):
        A("v_exp_f32 v%d, v%d" % (t+i, t+i))
    A("s_nop 0")
    A("v_pk_add_f32 %s, %s, s[42:43]" % (vr(t, 2), vr(t, 2)))
    A("v_pk_add_f32 %s, %s, s[42:43]" % (vr(t+2, 2), vr(t+2, 2)))
    for i in range(4):
        A("v_rcp_f32 v%d, v%d" % (t+i, t+i))
    A("s_nop 0")
    A("v_pk_mul_f32 %s, %s, %s" % (vr(g, 2), vr(g, 2), vr(t, 2)))
    A("v_pk_mul_f32 %s, %s, %s" % (vr(g+2, 2), vr(g+2, 2), vr(t+2, 2)))
    rnd2(A, g, g+1, t); rnd2(A, g+2, g+3, t+1)
    A("v_pk_mul_f32 %s, %s, %s" % (vr(g, 2), vr(g, 2), vr(u, 2)))
    A("v_pk_mul_f32 %s, %s, %s" % (vr(g+2, 2), vr(g+2, 2), vr(u+2, 2)))
    A("v_cvt_pk_bf16_f32 v%d, v%d, v%d" % (out, g, g+1))
    A("v_cvt_pk_bf16_f32 v%d, v%d, v%d" % (out+1, g+2, g+3))

def gen_gemm1(A, name="gemm1_kernel"):
    kernel_head(A, name)
    L = "Lg1_"
    A("s_cmp_ge_u32 s2, 256")
    A("s_cbranch_scc1 %send" % L)
    if "ts" in EXP: A("s_memtime s[60:61]\ns_memrealtime s[80:81]\ns_load_dwordx2 s[70:71], s[0:1], 104")
    A("s_load_dwordx4 s[24:27], s[0:1], 56")
    A("s_load_dwordx2 s[28:29], s[0:1], 112")
    A("s_load_dwordx2 s[44:45], s[0:1], 72")
    A("v_lshrrev_b32 v1, 6, v0")
    A("v_and_b32 v2, 63, v0")
    A("v_readfirstlane_b32 s18, v1")
    A("s_and_b32 s16, s2, 7\ns_lshl_b32 s16, s16, 2\ns_lshr_b32 s17, s2, 3\ns_and_b32 s17, s17, 3\ns_add_u32 s16, s16, s17")
    A("s_lshr_b32 s17, s2, 5")
    A("s_and_b32 s19, s18, 3")
    A("s_lshr_b32 s20, s18, 2")
    A("v_lshrrev_b32 v20, 4, v2")
    A("v_and_b32 v21, 15, v2")
    A("v_lshrrev_b32 v22, 3, v2")
    A("v_and_b32 v23, 7, v2")
    A("v_xor_b32 v24, v23, v20\nv_lshlrev_b32 v24, 4, v24\nv_lshl_add_u32 v4, v22, 11, v24")
    A("v_xor_b32 v5, 64, v4")
    A("v_lshrrev_b32 v24, 1, v21\nv_and_b32 v25, 1, v21")
    A("s_movk_i32 s21, 7168")
    A("v_mul_lo_u32 v26, v20, s21")
    A("v_lshl_add_u32 v26, v25, 4, v26")
    A("v_mov_b32 v28, 0x80000000")
    for (dst, fx) in ((6, 0), (7, 4)):
        A("v_xor_b32 v27, v24, v20")
        if fx: A("v_xor_b32 v27, %d, v27" % fx)
        A("v_cmp_ne_u32 vcc, 7, v27")
        A("v_lshl_add_u32 v27, v27, 5, v26")
        A("s_nop 1")
        A("v_cndmask_b32 v%d, v28, v27, vcc" % dst)
    A("s_lshl_b32 s30, s17, 19\ns_lshl_b32 s21, s18, 16\ns_add_u32 s30, s30, s21")
    A("s_mul_i32 s31, s16, 224\ns_mul_i32 s21, s19, %d\ns_add_u32 s31, s31, s21" % (16*7168))
    A("s_lshl_b32 s33, s18, 12")
    A("s_add_u32 s32, s33, 65536")
    A("s_add_u32 s36, s33, %d" % (65536 + 98304))
    A("s_waitcnt lgkmcnt(0)")
    if "ts2" in EXP: A("s_memtime s[84:85]")
    make_srd(A, 4, 28, 29, WS_H2, 2048*1024*2)
    A("s_cmp_eq_u32 s20, 0")
    A("s_cselect_b32 s8, s24, s26")
    A("s_cselect_b32 s9, s25, s27")
    A("s_mov_b32 s10, %d" % (1024*3584*2))
    A("s_mov_b32 s11, 0x00020000")

    def dmaA_ops():
        ops = []
        for ii in range(4):
            ops.append(["s_add_u32 m0, s32, %d" % (ii*1024),
                        "s_add_u32 s34, s30, %d" % (ii*8*2048),
                        "buffer_load_dwordx4 v%d, s[4:7], s34 offen lds" % (4 + (ii & 1))])
        ops[-1] = ops[-1] + ["s_add_u32 s30, s30, 128", "s_add_u32 s32, s32, 32768", "s_cmp_ge_u32 s32, s36",
                             "s_cselect_b32 s37, 98304, 0", "s_sub_u32 s32, s32, s37"]
        return ops
    def dmaB_ops(buf):
        ops = []
        for jj in range(4):
            ops.append(["s_add_u32 m0, s33, %d" % (buf*32768 + jj*1024),
                        "s_add_u32 s34, s31, %d" % (jj*4*7168),
                        "buffer_load_dwordx4 v%d, s[8:11], s34 offen lds" % (6 + (jj >> 1))])
        ops[-1] = ops[-1] + ["s_add_u32 s31, s31, %d" % (64*7168)]
        return ops
    def emit(groups):
        for g in groups:
            for x in g: A(x)
    emit(dmaB_ops(0)); emit(dmaA_ops())
    A("s_barrier")
    emit(dmaB_ops(1)); emit(dmaA_ops())

    if "ts2" in EXP: A("s_memtime s[86:87]\ns_waitcnt vmcnt(19)\ns_memtime s[88:89]\ns_waitcnt vmcnt(16)\ns_memtime s[90:91]")
    make_srd(A, 12, 28, 29, WS_HH, 2048*3584*2)
    A("v_lshrrev_b32 v24, 1, v21\nv_xor_b32 v24, v24, v20\nv_lshlrev_b32 v24, 4, v24\nv_lshl_add_u32 v24, v21, 7, v24")
    A("s_lshl_b32 s21, s19, 13\ns_add_u32 s21, s21, 65536")
    A("v_add_u32 v18, s21, v24")
    A("v_xor_b32 v19, 64, v18")
    A("v_mov_b32 v8, v18\nv_mov_b32 v9, v19")
    A("s_mov_b32 s38, 0\ns_mov_b32 s39, 0")
    A("v_lshrrev_b32 v24, 2, v21\nv_and_b32 v25, 3, v21\nv_and_b32 v26, 1, v20\nv_lshl_or_b32 v26, v26, 2, v24")
    A("v_lshl_add_u32 v27, v20, 3, v24")
    A("v_lshlrev_b32 v27, 8, v27\nv_lshl_add_u32 v27, v25, 3, v27")
    A("s_lshl_b32 s21, s20, 2")
    for slot in range(7):
        if slot < 3:
            A("s_add_u32 s22, s21, %d\ns_mov_b32 s23, 0" % slot)
        elif slot == 3:
            A("s_mov_b32 s22, 3\ns_lshl_b32 s23, s20, 14")
        else:
            A("s_add_u32 s22, s21, %d\ns_mov_b32 s23, 16384" % (slot-4))
        A("v_xor_b32 v24, s22, v26")
        A("v_lshl_add_u32 v24, v24, 5, v27")
        A("v_add_u32 v%d, s23, v24" % (10+slot))
    A("s_mov_b32 s40, %s\ns_mov_b32 s41, %s\ns_mov_b32 s42, 1.0\ns_mov_b32 s43, 1.0" % (LOG2E_NEG, LOG2E_NEG))

    PT, PW, QT, QW, ACC = 32, 48, 76, 92, 128
    def read_ops(setT, setW, buf, kk):
        ops = []
        if "nords" in EXP: return ops
        for tb in range(4):
            ops.append("ds_read_b128 %s, v%d offset:%d" % (vr(setT+4*tb), 8+kk, tb*2048))
        sreg = 38 + kk
        ops[-1] = ops[-1] + "\ns_add_u32 s%d, s%d, 32768\ns_cmp_ge_u32 s%d, 98304\ns_cselect_b32 s%d, 0, s%d\nv_add_u32 v%d, s%d, v%d" % (sreg, sreg, sreg, sreg, sreg, 8+kk, sreg, 18+kk)
        for slot in range(7):
            for h in range(2):
                ops.append("ds_read_b64_tr_b16 %s, v%d offset:%d" % (vr(setW+4*slot+2*h, 2), 10+slot, buf*32768 + (32*kk+4*h)*256))
        return ops
    def mfma_ops(setT, setW):
        ops = []
        for slot in range(7):
            for tb in range(4):
                a = ACC + (slot*4+tb)*4
                ops.append("v_mfma_f32_16x16x32_bf16 %s, %s, %s, %s" % (vr(a), vr(setW+4*slot), vr(setT+4*tb), vr(a)))
        return ops
    def interleave(mf, fill):
        for i, m in enumerate(mf):
            if "nomfma" not in EXP: A(m)
            for x in fill.get(i, []):
                A(x)

    for i in range(112):
        A("v_mov_b32 v%d, 0" % (ACC+i))
    A("s_waitcnt vmcnt(8)")
    A("s_barrier")
    if "ts" in EXP: A("s_memtime s[62:63]")
    for x in read_ops(PT, PW, 0, 0): A(x)

    def stage(buf, dmaB, dmaA, do_next, vm, extraA=False):
        A("s_waitcnt lgkmcnt(0)")
        rd = read_ops(QT, QW, buf, 1)
        fill = {}
        RPG = int(os.environ.get("RPG", "2"))
        for i, r in enumerate(rd):
            fill.setdefault(i // RPG, []).append(r)
        if extraA:
            for i, g in enumerate(dmaA_ops()):
                fill.setdefault(10 + 2*i, []).extend(g)
        interleave(mfma_ops(PT, PW), fill)
        A("s_waitcnt vmcnt(%d) lgkmcnt(0)" % vm)
        A("s_barrier")
        fill = {}
        rd = read_ops(PT, PW, buf ^ 1, 0) if do_next else []
        dB = dmaB_ops(buf) if (dmaB and "nodma" not in EXP) else []
        dA = dmaA_ops() if (dmaA and "nodma" not in EXP) else []
        if RPG == 2:
            gap = 0
            for g in dB:
                fill.setdefault(gap, []).extend(g); gap += 1
            for i, r in enumerate(rd):
                fill.setdefault(gap + i // 2, []).append(r)
            gap += (len(rd) + 1) // 2
            for g in dA:
                fill.setdefault(gap, []).extend(g); gap += 2
        else:
            for i, r in enumerate(rd):
                fill.setdefault(i, []).append(r)
            for i, g in enumerate(dB + dA):
                fill.setdefault(1 + 3*i, []).extend(g)
        interleave(mfma_ops(QT, QW), fill)

    stage(0, True, True, True, 4, True)
    stage(1, True, True, True, 4)
    A("s_mov_b32 s35, 0")
    A("%sloop:" % L)
    stage(0, True, True, True, 4)
    stage(1, True, True, True, 4)
    A("s_add_u32 s35, s35, 1")
    A("s_cmp_lt_u32 s35, 5")
    A("s_cbranch_scc1 %sloop" % L)
    stage(0, True, True, True, 4)
    stage(1, True, False, True, 4)
    stage(0, False, False, True, 0)
    stage(1, False, False, False, 0)

    if "ts" in EXP: A("s_memtime s[64:65]")
    make_srd(A, 48, 44, 45, 0, 3584*1024*2)
    A("v_lshlrev_b32 v24, 7, v0\nv_cmp_gt_u32 vcc, 224, v0\nv_mov_b32 v25, 0x80000000\ns_mul_i32 s21, s2, 28672\nv_cndmask_b32 v24, v25, v24, vcc")
    A("buffer_load_dword v30, v24, s[48:51], s21 offen")
    A("s_nop 3")
    A("v_lshlrev_b32 v24, 4, v2")
    A("s_lshl_b32 s21, s18, 11")
    A("v_add_u32 v25, s21, v24")
    A("s_xor_b32 s21, s18, 4\ns_lshl_b32 s21, s21, 11")
    A("v_add_u32 v26, s21, v24")
    s3 = ACC + 12*4
    A("s_cmp_eq_u32 s20, 0")
    A("s_cbranch_scc0 %sx1" % L)
    A("ds_write_b128 v25, %s" % vr(s3+8))
    A("ds_write_b128 v25, %s offset:1024" % vr(s3+12))
    A("s_branch %sx2" % L)
    A("%sx1:" % L)
    A("ds_write_b128 v25, %s" % vr(s3))
    A("ds_write_b128 v25, %s offset:1024" % vr(s3+4))
    A("%sx2:" % L)
    A("s_waitcnt lgkmcnt(0)")
    A("s_barrier")
    A("ds_read_b128 v[32:35], v26")
    A("ds_read_b128 v[36:39], v26 offset:1024")
    A("v_and_b32 v24, 1, v20\nv_lshl_add_u32 v24, v24, 4, v21\nv_lshlrev_b32 v24, 5, v24")
    A("v_lshrrev_b32 v25, 1, v20\nv_lshl_add_u32 v27, v25, 4, v24")
    A("s_mul_i32 s21, s17, 224\ns_mul_i32 s22, s16, 7\ns_add_u32 s21, s21, s22\ns_lshl_b32 s21, s21, 13")
    A("s_lshl_b32 s22, s19, 11\ns_add_u32 s21, s21, s22")
    A("s_lshl_b32 s22, s20, 15\ns_add_u32 s22, s22, s21")
    T = 40
    O = 60
    cnt = 0
    def pair(g0, u0, g1, u1, soff_expr):
        nonlocal cnt
        o = O + 4*(cnt % 4); t = T + 8*(cnt % 2); cnt += 1
        emit_swiglu(A, g0, u0, o, t)
        emit_swiglu(A, g1, u1, o+2, t+4)
        A(soff_expr)
        A("s_nop 0")
        A("v_permlane16_swap_b32 v%d, v%d" % (o, o+2))
        A("v_permlane16_swap_b32 v%d, v%d" % (o+1, o+3))
        A("buffer_store_dwordx4 %s, v27, s[12:15], s23 offen" % vr(o))
    for j in range(3):
        for tp in range(2):
            tb = 2*tp
            g = ACC + (j*4+tb)*4
            u = ACC + ((j+4)*4+tb)*4
            pair(g, u, g+4, u+4, "s_add_u32 s23, s22, %d" % (j*8192 + tb*512))
    A("s_waitcnt lgkmcnt(0)")
    A("s_cmp_eq_u32 s20, 0")
    A("s_cbranch_scc0 %sy1" % L)
    pair(s3, 32, s3+4, 36, "s_add_u32 s23, s21, %d" % (3*8192))
    A("s_branch %sfin" % L)
    A("%sy1:" % L)
    pair(32, s3+8, 36, s3+12, "s_add_u32 s23, s21, %d" % (3*8192 + 2*512))
    A("%sfin:" % L)
    if "ts" in EXP:
        A("s_memtime s[66:67]")
        A("s_waitcnt vmcnt(0)")
        A("s_memtime s[68:69]")
        A("s_memrealtime s[82:83]")
        A("s_waitcnt lgkmcnt(0)")
        A("s_sub_u32 s66, s82, s80\ns_add_u32 s66, s66, s60")
        A("s_sub_u32 s62, s62, s60\ns_sub_u32 s64, s64, s60\ns_sub_u32 s66, s66, s60\ns_sub_u32 s68, s68, s60")
        A("s_mov_b32 s72, s70\ns_mov_b32 s73, s71\ns_mov_b32 s74, 256\ns_mov_b32 s75, 0x00020000")
        if "ts2" in EXP: A("s_sub_u32 s62, s84, s60\ns_sub_u32 s64, s86, s60\ns_sub_u32 s66, s88, s60\ns_sub_u32 s68, s90, s60")
        A("v_mov_b32 v40, s62\nv_mov_b32 v41, s64\nv_mov_b32 v42, s66\nv_mov_b32 v43, s68")
        A("s_lshr_b32 s21, s2, 7\ns_lshl_b32 s21, s21, 3\ns_add_u32 s21, s21, s18\ns_lshl_b32 s21, s21, 4\nv_mov_b32 v44, s21")
        A("s_and_b32 s22, s2, 127\ns_cmp_eq_u32 s22, 5\ns_cbranch_scc0 %send" % L)
        A("v_cmp_eq_u32 vcc, 0, v2\ns_and_saveexec_b64 s[76:77], vcc")
        A("buffer_store_dwordx4 v[40:43], v44, s[72:75], 0 offen")
    A("%send:" % L)
    A("s_endpgm")
    return name
```

```python
from asmlib import *
import os
EXP = os.environ.get("EXP", "")
LDS = 131072
VGPR = 192
K0 = int(os.environ.get("K0", "26"))

def gen_gemm2(A, name="gemm2_kernel"):
    kernel_head(A, name)
    L = "Lg2_"
    A("s_cmp_ge_u32 s2, 256")
    A("s_cbranch_scc1 %send" % L)
    if "ts_old" in EXP: A("s_memtime s[60:61]\ns_memrealtime s[80:81]\ns_load_dwordx2 s[70:71], s[0:1], 104")
    ts_begin(A)
    A("s_load_dwordx2 s[24:25], s[0:1], 72")
    A("s_load_dwordx2 s[26:27], s[0:1], 96")
    A("s_load_dwordx2 s[28:29], s[0:1], 112")
    A("v_lshrrev_b32 v1, 6, v0")
    A("v_and_b32 v2, 63, v0")
    A("v_readfirstlane_b32 s18, v1")
    A("s_and_b32 s21, s2, 7\ns_lshr_b32 s22, s2, 3")
    A("s_and_b32 s44, s22, 1")
    A("s_lshr_b32 s22, s22, 1")
    if os.environ.get("G2MAP", "0") == "0":
        A("s_lshr_b32 s16, s21, 1\ns_lshl_b32 s16, s16, 2\ns_lshr_b32 s23, s22, 2\ns_add_u32 s16, s16, s23")
        A("s_and_b32 s17, s21, 1\ns_lshl_b32 s17, s17, 2\ns_and_b32 s23, s22, 3\ns_add_u32 s17, s17, s23")
    else:
        A("s_lshl_b32 s16, s21, 1\ns_lshr_b32 s23, s22, 3\ns_add_u32 s16, s16, s23")
        A("s_and_b32 s17, s22, 7")
    A("s_lshl_b32 s45, s16, 3\ns_add_u32 s45, s45, s17")
    A("s_and_b32 s19, s18, 1")
    A("s_lshr_b32 s20, s18, 1")
    A("s_cmp_eq_u32 s44, 0")
    A("s_cselect_b32 s46, %d, %d" % (K0, 56-K0))
    A("s_cselect_b32 s47, 0, %d" % K0)
    A("v_lshrrev_b32 v20, 4, v2")
    A("v_and_b32 v21, 15, v2")
    A("v_lshrrev_b32 v22, 3, v2")
    A("v_and_b32 v23, 7, v2")
    for (dst, fx) in ((4, 0), (5, 4)):
        A("v_xor_b32 v24, v23, v20")
        if fx: A("v_xor_b32 v24, 4, v24")
        A("v_lshrrev_b32 v25, 1, v24\nv_and_b32 v24, 1, v24")
        A("v_lshlrev_b32 v25, 13, v25\nv_lshl_add_u32 v25, v22, 5, v25\nv_lshl_add_u32 v%d, v24, 4, v25" % dst)
    A("s_lshl_b32 s21, s19, 2")
    A("v_or_b32 v24, s21, v20")
    A("v_lshrrev_b32 v25, 1, v21\nv_xor_b32 v24, v24, v25\nv_and_b32 v25, 1, v21")
    A("v_lshlrev_b32 v24, 5, v24\nv_lshl_add_u32 v24, v25, 4, v24\nv_lshl_add_u32 v6, v20, 11, v24")
    A("s_lshr_b32 s21, s16, 1\ns_mul_i32 s21, s21, 224\ns_lshl_b32 s22, s47, 2\ns_add_u32 s21, s21, s22\ns_lshl_b32 s30, s21, 13")
    A("s_and_b32 s21, s16, 1\ns_lshl_b32 s21, s21, 12\ns_add_u32 s30, s30, s21\ns_lshl_b32 s21, s18, 9\ns_add_u32 s30, s30, s21")
    A("s_lshl_b32 s21, s47, 17\ns_lshl_b32 s22, s18, 14\ns_add_u32 s31, s21, s22\ns_lshl_b32 s21, s17, 8\ns_add_u32 s31, s31, s21")
    A("s_lshl_b32 s33, s18, 11")
    A("s_mov_b32 s32, 0")
    A("s_mov_b32 s48, 0")
    A("s_waitcnt lgkmcnt(0)")
    make_srd(A, 4, 28, 29, WS_HH, 2048*3584*2)
    make_srd(A, 8, 24, 25, 0, 3584*1024*2)

    def dma_ops():
        ops = []
        pre = ["s_cmp_lt_u32 s48, s46", "s_cselect_b32 s36, s30, 0x80000000", "s_cselect_b32 s37, s31, 0x80000000", "s_add_u32 s49, s33, s32"]
        ops.append(pre + ["s_add_u32 m0, s49, 65536", "s_nop 0", "buffer_load_dwordx4 v4, s[4:7], s36 offen lds"])
        ops.append(["s_add_u32 m0, s49, %d" % (65536+1024), "s_add_u32 s34, s36, 256", "buffer_load_dwordx4 v5, s[4:7], s34 offen lds"])
        ops.append(["s_add_u32 m0, s49, 0", "s_nop 0", "buffer_load_dwordx4 v6, s[8:11], s37 offen lds"])
        ops.append(["s_add_u32 m0, s49, 1024", "s_add_u32 s34, s37, 8192", "buffer_load_dwordx4 v6, s[8:11], s34 offen lds",
                    "s_add_u32 s30, s30, 32768", "s_add_u32 s31, s31, %d" % (64*2048), "s_add_u32 s48, s48, 1",
                    "s_add_u32 s32, s32, 16384", "s_and_b32 s32, s32, 0xffff"])
        return ops
    def emit(groups):
        for g in groups:
            for x in g: A(x)
    emit(dma_ops())
    A("s_barrier")
    emit(dma_ops())

    A("v_lshrrev_b32 v24, 1, v21\nv_xor_b32 v24, v24, v20\nv_lshlrev_b32 v24, 4, v24\nv_lshl_add_u32 v24, v21, 7, v24")
    A("s_lshl_b32 s21, s19, 13\ns_add_u32 s21, s21, 65536")
    A("v_add_u32 v14, s21, v24")
    A("v_xor_b32 v15, 64, v14")
    A("v_lshrrev_b32 v24, 2, v21\nv_and_b32 v25, 3, v21\nv_and_b32 v26, 1, v20\nv_lshl_or_b32 v26, v26, 2, v24")
    A("v_lshl_add_u32 v27, v20, 3, v24")
    A("v_lshlrev_b32 v27, 8, v27\nv_lshl_add_u32 v27, v25, 3, v27")
    A("s_lshl_b32 s21, s20, 1")
    for j in range(2):
        A("s_add_u32 s22, s21, %d" % j)
        A("v_xor_b32 v24, s22, v26")
        A("v_lshl_add_u32 v%d, v24, 5, v27" % (16+j))
    A("s_mov_b32 s38, 0\ns_mov_b32 s39, 0")
    PT, PW, QT, QW, ACC = 32, 48, 56, 72, 96
    def read_ops(setT, setW, kk):
        sreg = 38 + kk
        vt = 8 + kk; vw = 10 + 2*kk
        ops = []
        pre = "v_add_u32 v%d, s%d, v%d\nv_add_u32 v%d, s%d, v16\nv_add_u32 v%d, s%d, v17\n" % (vt, sreg, 14+kk, vw, sreg, vw+1, sreg)
        pre += "s_add_u32 s%d, s%d, 16384\ns_and_b32 s%d, s%d, 0xffff\n" % (sreg, sreg, sreg, sreg)
        for tb in range(4):
            ops.append((pre if tb == 0 else "") + "ds_read_b128 %s, v%d offset:%d" % (vr(setT+4*tb), vt, tb*2048))
        for j in range(2):
            for h in range(2):
                ops.append("ds_read_b64_tr_b16 %s, v%d offset:%d" % (vr(setW+4*j+2*h, 2), vw+j, (32*kk+4*h)*256))
        return ops
    def mfma_ops(setT, setW):
        ops = []
        for j in range(2):
            for tb in range(4):
                a = ACC + (j*4+tb)*4
                ops.append("v_mfma_f32_16x16x32_bf16 %s, %s, %s, %s" % (vr(a), vr(setW+4*j), vr(setT+4*tb), vr(a)))
        return ops
    def interleave(mf, fill):
        for i, m in enumerate(mf):
            if "nomfma" not in EXP: A(m)
            for x in fill.get(i, []):
                A(x)
    for i in range(32):
        A("v_mov_b32 v%d, 0" % (ACC+i))
    A("s_waitcnt vmcnt(4)")
    A("s_barrier")
    if "ts_old" in EXP: A("s_memtime s[62:63]")
    ts(A, 0)
    for x in read_ops(PT, PW, 0): A(x)
    make_srd(A, 12, 28, 29, WS_PART, 128*65536)
    make_srd(A, 52, 28, 29, WS_FLAG, 128*128)
    A("v_lshlrev_b32 v24, 4, v2")
    A("s_lshl_b32 s21, s45, 16\ns_lshl_b32 s22, s18, 13\ns_add_u32 s21, s21, s22")
    A("s_lshl_b32 s22, s45, 7")
    A("v_mov_b32 v25, 0")
    A("s_sub_u32 s51, s46, 4")
    PR = 160
    def e_issue():
        make_srd(A, 56, 28, 29, WS_X1, 2048*1024*2)
        make_srd(A, 60, 28, 29, WS_MOD + 5*4096, 24576+4096)
        A("s_lshl_b32 s23, s17, 9\ns_lshl_b32 s34, s20, 7\ns_add_u32 s23, s23, s34")
        A("v_lshlrev_b32 v26, 4, v20")
        A("buffer_load_dwordx4 v[128:131], v26, s[60:63], s23 offen")
        A("buffer_load_dwordx4 v[132:135], v26, s[60:63], s23 offen offset:64")
        A("s_add_u32 s23, s23, 24576")
        A("buffer_load_dwordx4 v[136:139], v26, s[60:63], s23 offen")
        A("buffer_load_dwordx4 v[140:143], v26, s[60:63], s23 offen offset:64")
        A("v_and_b32 v26, 1, v20\nv_lshl_add_u32 v26, v26, 4, v21\nv_lshlrev_b32 v26, 11, v26")
        A("v_lshrrev_b32 v31, 1, v20\nv_lshl_add_u32 v31, v31, 4, v26")
        A("s_lshl_b32 s23, s16, 18\ns_lshl_b32 s34, s19, 17\ns_add_u32 s23, s23, s34\ns_lshl_b32 s34, s17, 8\ns_add_u32 s23, s23, s34\ns_lshl_b32 s34, s20, 6\ns_add_u32 s50, s23, s34")
        idx = 0
        for j in range(2):
            for tp in range(2):
                A("s_add_u32 s23, s50, %d" % (tp*32*2048))
                A("buffer_load_dwordx4 %s, v31, s[56:59], s23 offen offset:%d" % (vr(144+4*idx), j*32))
                idx += 1
    def step(vm, dma, extra_x=None, first=False):
        A("s_waitcnt lgkmcnt(0)")
        rd = read_ops(QT, QW, 1)
        fill = {}
        for i, r in enumerate(rd):
            fill.setdefault(i // 2, []).append(r)
        if first:
            for i, gg in enumerate(dma_ops() + dma_ops()):
                fill.setdefault(i, []).extend(gg)
        interleave(mfma_ops(PT, PW), fill)
        if vm is not None: A("s_waitcnt vmcnt(%d) lgkmcnt(0)" % vm)
        else: A("s_waitcnt lgkmcnt(0)")
        A("s_barrier")
        if extra_x: extra_x()
        fill = {}
        rd = read_ops(PT, PW, 0)
        for i, r in enumerate(rd):
            fill.setdefault(i // 2, []).append(r)
        if dma and "nodma" not in EXP:
            for i, gg in enumerate(dma_ops()):
                fill.setdefault(4 + i, []).extend(gg)
        interleave(mfma_ops(QT, QW), fill)
    step(8, True, None, True)
    A("s_mov_b32 s35, 1")
    A("%sloop:" % L)
    step(8, True)
    A("s_add_u32 s35, s35, 1")
    A("s_cmp_lt_u32 s35, s51")
    A("s_cbranch_scc1 %sloop" % L)
    def poll_issue():
        A("buffer_load_dword v28, v25, s[52:55], s22 offen sc0 sc1")
    def part_issue():
        A("s_cmp_eq_u32 s44, 0")
        A("s_cbranch_scc1 %snopart" % L)
        A("s_waitcnt vmcnt(0)")
        A("%spoll:" % L)
        A("v_readfirstlane_b32 s34, v28")
        A("s_cmp_eq_u32 s34, 1")
        A("s_cbranch_scc1 %sgot" % L)
        A("s_sleep 1")
        A("buffer_load_dword v28, v25, s[52:55], s22 offen sc0 sc1")
        A("s_waitcnt vmcnt(0)")
        A("s_branch %spoll" % L)
        A("%sgot:" % L)
        for i in range(8):
            A("s_add_u32 s23, s21, %d" % (i*1024))
            A("buffer_load_dwordx4 %s, v24, s[12:15], s23 offen sc0 sc1" % vr(PR+4*i))
        A("%snopart:" % L)
    POLLAT = int(os.environ.get("POLLAT", "1"))
    ts(A, 1)
    step(8, False, e_issue)
    step(12, False, poll_issue)
    step(9, False, part_issue)
    step(None, False)
    if "ts_old" in EXP: A("s_memtime s[64:65]")
    ts(A, 2)
    A("s_waitcnt lgkmcnt(0)")
    A("s_nop 7")
    A("s_cmp_eq_u32 s44, 0")
    A("s_cbranch_scc0 %slate" % L)
    for i in range(8):
        A("s_add_u32 s23, s21, %d" % (i*1024))
        A("buffer_store_dwordx4 %s, v24, s[12:15], s23 offen sc0 sc1" % vr(ACC+4*i))
    A("s_waitcnt vmcnt(0)")
    A("s_barrier")
    A("s_cmp_eq_u32 s18, 0")
    A("s_cbranch_scc0 %sfin" % L)
    A("v_mov_b32 v26, 1")
    A("v_cmp_eq_u32 vcc, 0, v2")
    A("s_and_saveexec_b64 s[56:57], vcc")
    A("buffer_store_dword v26, v25, s[52:55], s22 offen sc0 sc1")
    A("s_waitcnt vmcnt(0)")
    A("s_mov_b64 exec, s[56:57]")
    A("s_branch %sfin" % L)
    A("%slate:" % L)
    for r in range(8): A("v_add_f32 v%d, v%d, v%d" % (32+r, 128+r, 136+r))
    for r in range(0, 8, 2): rnd2(A, 32+r, 33+r, 28)
    XR = 144
    A("v_mov_b32 v27, v31")
    make_srd(A, 12, 26, 27, 0, 2048*1024*2)
    idx = 0
    for j in range(2):
        for tp in range(2):
            o = 56 + 4*(idx % 2)
            for t in range(2):
                tb = 2*tp + t
                a = ACC + (j*4+tb)*4
                p = PR + (j*4+tb)*4
                A("s_waitcnt vmcnt(%d)" % (7 - (j*4+tb) + (idx if False else 0) + 0) if False else "s_waitcnt vmcnt(%d)" % (7 - (j*4+tb) + idx))
                for r in range(4):
                    A("v_add_f32 v%d, v%d, v%d" % (a+r, a+r, p+r))
                A("v_cvt_pk_bf16_f32 v%d, v%d, v%d" % (p, a, a+1))
                A("v_cvt_pk_bf16_f32 v%d, v%d, v%d" % (p+1, a+2, a+3))
                A("v_lshlrev_b32 v%d, 16, v%d\nv_and_b32 v%d, 0xffff0000, v%d" % (a, p, a+1, p))
                A("v_lshlrev_b32 v%d, 16, v%d\nv_and_b32 v%d, 0xffff0000, v%d" % (a+2, p+1, a+3, p+1))
                for r in range(4):
                    A("v_mul_f32 v%d, v%d, v%d" % (a+r, a+r, 32+4*j+r))
                A("v_cvt_pk_bf16_f32 v%d, v%d, v%d" % (o+2*t, a, a+1))
                A("v_cvt_pk_bf16_f32 v%d, v%d, v%d" % (o+2*t+1, a+2, a+3))
            A("s_nop 1")
            A("v_permlane16_swap_b32 v%d, v%d" % (o, o+2))
            A("v_permlane16_swap_b32 v%d, v%d" % (o+1, o+3))
            x = XR + 4*idx
            a = ACC + (j*4+2*tp)*4
            for d in range(4):
                A("v_lshlrev_b32 v%d, 16, v%d\nv_and_b32 v%d, 0xffff0000, v%d" % (a+2*d, o+d, a+2*d+1, o+d))
                A("v_lshlrev_b32 v%d, 16, v%d\nv_and_b32 v%d, 0xffff0000, v%d" % (28, x+d, 29, x+d))
                A("v_add_f32 v%d, v%d, v28\nv_add_f32 v%d, v%d, v29" % (a+2*d, a+2*d, a+2*d+1, a+2*d+1))
                A("v_cvt_pk_bf16_f32 v%d, v%d, v%d" % (x+d, a+2*d, a+2*d+1))
            A("s_add_u32 s23, s50, %d" % (tp*32*2048))
            A("buffer_store_dwordx4 %s, v27, s[12:15], s23 offen offset:%d" % (vr(x), j*32))
            idx += 1
    A("%sfin:" % L)
    ts_dump(A, 3, L+"end", wg=int(os.environ.get("TSWG", "5")))
    if "ts_old" in EXP:
        A("s_waitcnt vmcnt(0)")
        A("s_memtime s[68:69]")
        A("s_memrealtime s[82:83]")
        A("s_waitcnt lgkmcnt(0)")
        A("s_sub_u32 s66, s82, s80")
        A("s_sub_u32 s62, s62, s60\ns_sub_u32 s64, s64, s60\ns_sub_u32 s68, s68, s60")
        A("s_mov_b32 s72, s70\ns_mov_b32 s73, s71\ns_mov_b32 s74, 256\ns_mov_b32 s75, 0x00020000")
        A("v_mov_b32 v40, s62\nv_mov_b32 v41, s64\nv_mov_b32 v42, s66\nv_mov_b32 v43, s68")
        A("s_lshl_b32 s21, s44, 3\ns_add_u32 s21, s21, s18\ns_lshl_b32 s21, s21, 4\nv_mov_b32 v44, s21")
        A("s_cmp_eq_u32 s45, 5\ns_cbranch_scc0 %send" % L)
        A("v_cmp_eq_u32 vcc, 0, v2\ns_and_saveexec_b64 s[76:77], vcc")
        A("buffer_store_dwordx4 v[40:43], v44, s[72:75], 0 offen")
    A("%send:" % L)
    A("s_endpgm")
    return name
```

```python
from asmlib import *
import os
from gen_gemm1 import emit_swiglu, LOG2E_NEG
EXP = os.environ.get("EXP", "")
LDS = 163840
VGPR = 240
BLOCK = 512
K0 = int(os.environ.get("K0", "25"))
SC = " sc0 sc1"
WS_GFLAG = WS_FLAG + 0x8000

def pk(A, op, d, a, b, mod=""):
    A("v_pk_%s_f32 %s, %s, %s%s" % (op, vr(d, 2), vr(a, 2), b if isinstance(b, str) else vr(b, 2), mod))

def gen_ffn(A, name="ffn_kernel"):
    kernel_head(A, name)
    L = "Lf_"
    A("s_cmp_ge_u32 s2, 256")
    A("s_cbranch_scc1 %send" % L)
    ts_begin(A)
    A("s_load_dwordx2 s[64:65], s[0:1], 0")
    A("s_load_dwordx4 s[68:71], s[0:1], 56")
    A("s_load_dwordx2 s[66:67], s[0:1], 72")
    A("s_load_dwordx2 s[72:73], s[0:1], 96")
    A("s_load_dwordx2 s[74:75], s[0:1], 112")
    A("v_lshrrev_b32 v1, 6, v0")
    A("v_and_b32 v2, 63, v0")
    A("v_readfirstlane_b32 s18, v1")
    A("v_lshrrev_b32 v20, 4, v2")
    A("v_and_b32 v21, 15, v2")
    A("s_and_b32 s16, s2, 7\ns_lshl_b32 s16, s16, 2\ns_lshr_b32 s17, s2, 3\ns_and_b32 s17, s17, 3\ns_add_u32 s16, s16, s17")
    A("s_lshr_b32 s17, s2, 5")
    A("s_and_b32 s19, s18, 3")
    A("s_lshr_b32 s20, s18, 2")
    A("v_lshrrev_b32 v24, 1, v21\nv_and_b32 v25, 1, v21")
    A("s_movk_i32 s21, 7168")
    A("v_mul_lo_u32 v26, v20, s21")
    A("v_lshl_add_u32 v26, v25, 4, v26")
    A("v_mov_b32 v28, 0x80000000")
    for (dst, fx) in ((6, 0), (7, 4)):
        A("v_xor_b32 v27, v24, v20")
        if fx: A("v_xor_b32 v27, %d, v27" % fx)
        A("v_cmp_ne_u32 vcc, 7, v27")
        A("v_lshl_add_u32 v27, v27, 5, v26")
        A("s_nop 1")
        A("v_cndmask_b32 v%d, v28, v27, vcc" % dst)
    A("s_mul_i32 s31, s16, 224\ns_mul_i32 s21, s19, %d\ns_add_u32 s31, s31, s21" % (16*7168))
    A("s_lshl_b32 s33, s18, 12")
    A("v_lshlrev_b32 v3, 5, v2")
    A("v_lshlrev_b32 v4, 5, v0")
    A("v_lshlrev_b32 v5, 3, v0")
    A("s_lshl_b32 s22, s2, 14")
    A("s_lshl_b32 s23, s18, 11\ns_add_u32 s23, s23, s22")
    A("s_waitcnt lgkmcnt(0)")
    make_srd(A, 4, 64, 65, 0, 2048*1024*2)
    make_srd(A, 12, 74, 75, WS_YT, 1024*2048*2)
    make_srd(A, 24, 74, 75, WS_MOD, 2*6144*4)
    make_srd(A, 36, 74, 75, WS_X1, 2048*1024*2)
    make_srd(A, 40, 74, 75, WS_H2, 2048*1024*2)
    A("s_cmp_eq_u32 s20, 0")
    A("s_cselect_b32 s8, s68, s70")
    A("s_cselect_b32 s9, s69, s71")
    A("s_mov_b32 s10, %d" % (1024*3584*2))
    A("s_mov_b32 s11, 0x00020000")
    YL = 65536; YLS = 2064; ML = YL + 8*YLS
    XR, YR, MR, M2 = 32, 40, 48, 58
    for c in range(2):
        A("buffer_load_dwordx4 %s, v4, s[12:15], s22 offen offset:%d" % (vr(YR+4*c), 16*c))
    for j in range(5):
        A("s_movk_i32 s21, %d" % (j*4096))
        A("buffer_load_dwordx2 %s, v5, s[24:27], s21 offen" % vr(MR+2*j, 2))
        A("s_add_u32 s21, s21, 24576")
        A("buffer_load_dwordx2 %s, v5, s[24:27], s21 offen" % vr(M2+2*j, 2))
    for c in range(2):
        A("buffer_load_dwordx4 %s, v3, s[4:7], s23 offen offset:%d" % (vr(XR+4*c), 16*c))
    def dmaB_ops(buf):
        ops = []
        for jj in range(4):
            ops.append(["s_add_u32 m0, s33, %d" % (buf*32768 + jj*1024),
                        "s_add_u32 s34, s31, %d" % (jj*4*7168),
                        "buffer_load_dwordx4 v%d, s[8:11], s34 offen lds" % (6 + (jj >> 1))])
        ops[-1] = ops[-1] + ["s_add_u32 s31, s31, %d" % (64*7168)]
        return ops
    def emit(groups):
        for g in groups:
            for x in g: A(x)
    emit(dmaB_ops(0)); emit(dmaB_ops(1))
    A("v_lshlrev_b32 v22, 2, v0\nv_add_u32 v22, %d, v22" % YL)
    A("v_add_u32 v23, %d, v5" % ML)
    A("s_mov_b32 s44, 0x05040100\ns_mov_b32 s45, 0x07060302")
    A("s_waitcnt vmcnt(20)")
    for i in range(8):
        A("v_perm_b32 v%d, v%d, v%d, s%d" % (68+i, YR+4+i//2, YR+i//2, 44 + (i & 1)))
        A("ds_write_b32 v22, v%d offset:%d" % (68+i, i*YLS))
    A("s_waitcnt vmcnt(10)")
    for j in range(5): pk(A, "add", MR+2*j, MR+2*j, M2+2*j)
    for j in range(5): rnd2(A, MR+2*j, MR+2*j+1, 76+j)
    for j in (1, 4):
        A("v_add_f32 v%d, 1.0, v%d\nv_add_f32 v%d, 1.0, v%d" % (MR+2*j, MR+2*j, MR+2*j+1, MR+2*j+1))
        rnd2(A, MR+2*j, MR+2*j+1, 76+j)
    for j in range(5):
        A("ds_write_b64 v23, %s offset:%d" % (vr(MR+2*j, 2), j*4096))
    X = 72; H = 88; M = 104; T = 8
    A("s_waitcnt vmcnt(8)")
    for q in range(8): unpack2(A, X+2*q, X+2*q+1, XR+q)
    def wave_sum(r):
        for step in ("row_ror:1", "row_ror:2", "row_ror:4", "row_ror:8"):
            A("s_nop 1")
            A("v_add_f32_dpp v%d, v%d, v%d %s row_mask:0xf bank_mask:0xf" % (r, r, r, step))
        A("s_nop 1")
        A("v_add_f32_dpp v%d, v%d, v%d row_bcast:15 row_mask:0xa bank_mask:0xf" % (r, r, r))
        A("s_nop 1")
        A("v_add_f32_dpp v%d, v%d, v%d row_bcast:31 row_mask:0xc bank_mask:0xf" % (r, r, r))
        A("s_nop 0")
        A("v_readlane_b32 s46, v%d, 63" % r)
    def stats():
        pk(A, "add", T, X, X+2); pk(A, "add", T+2, X+4, X+6); pk(A, "add", T+4, X+8, X+10); pk(A, "add", T+6, X+12, X+14)
        pk(A, "add", T, T, T+2); pk(A, "add", T+4, T+4, T+6); pk(A, "add", T, T, T+4)
        A("v_add_f32 v%d, v%d, v%d" % (T, T, T+1))
        wave_sum(T)
        A("s_nop 1")
        A("v_mov_b32 v%d, 0x3a800000" % (T+1))
        A("v_mul_f32 v%d, s46, v%d" % (T+2, T+1))
        A("v_mov_b32 v%d, v%d" % (T+3, T+2))
        for q in range(8): pk(A, "add", H+2*q, X+2*q, T+2, " neg_lo:[0,1] neg_hi:[0,1]")
        pk(A, "mul", T+4, H, H); pk(A, "mul", T+6, H+2, H+2)
        for q in range(2, 8): A("v_pk_fma_f32 %s, %s, %s, %s" % (vr(T+4+2*(q & 1), 2), vr(H+2*q, 2), vr(H+2*q, 2), vr(T+4+2*(q & 1), 2)))
        pk(A, "add", T+4, T+4, T+6)
        A("v_add_f32 v%d, v%d, v%d" % (T+4, T+4, T+5))
        wave_sum(T+4)
        A("s_nop 1")
        A("v_mul_f32 v%d, s46, v%d" % (T+4, T+1))
        rnd2(A, T+4, T+2, T+5)
        A("v_add_f32 v%d, 0x3727c5ac, v%d" % (T+4, T+4))
        rnd2(A, T+4, T+5, T+6)
        A("v_sqrt_f32 v%d, v%d" % (T+4, T+4))
        A("s_nop 0")
        rnd2(A, T+4, T+5, T+6)
        A("v_rcp_f32 v%d, v%d" % (T+4, T+4))
        A("v_mov_b32 v%d, v%d" % (T+3, T+2))
        A("v_mov_b32 v%d, v%d" % (T+5, T+4))
    def apply(scale, shift, final_pack=None):
        for q in range(8):
            d = H + 2*q
            pk(A, "add", d, X+2*q, T+2, " neg_lo:[0,1] neg_hi:[0,1]")
            rnd2(A, d, d+1, T)
            pk(A, "mul", d, d, T+4)
            rnd2(A, d, d+1, T)
            pk(A, "mul", d, d, M+16*scale+2*q)
            rnd2(A, d, d+1, T)
            pk(A, "add", d, d, M+16*shift+2*q)
            if final_pack is None: rnd2(A, d, d+1, T)
            else: A("v_cvt_pk_bf16_f32 v%d, v%d, v%d" % (final_pack+q, d, d+1))
    stats()
    A("s_waitcnt lgkmcnt(0)")
    A("s_barrier")
    ts(A, 0)
    A("s_mul_i32 s21, s18, %d\ns_add_u32 s21, s21, %d" % (YLS, YL))
    A("v_add_u32 v22, s21, v3")
    A("v_lshlrev_b32 v23, 6, v2\nv_add_u32 v23, %d, v23" % ML)
    for j in (1, 0):
        for q in range(4):
            A("ds_read_b128 %s, v23 offset:%d" % (vr(M+16*j+4*q), j*4096 + 16*q))
    A("ds_read_b128 %s, v22" % vr(YR))
    A("ds_read_b128 %s, v22 offset:16" % vr(YR+4))
    for j in (2, 4, 3):
        for q in range(4):
            A("ds_read_b128 %s, v23 offset:%d" % (vr(M+16*j+4*q), j*4096 + 16*q))
    A("s_waitcnt lgkmcnt(14)")
    apply(1, 0)
    A("s_waitcnt lgkmcnt(8)")
    for q in range(8):
        d = H + 2*q
        unpack2(A, T+2, T+3, YR+q)
        pk(A, "mul", d, d, T+2)
        rnd2(A, d, d+1, T)
        pk(A, "mul", d, d, M+32+2*q)
        rnd2(A, d, d+1, T)
        pk(A, "add", X+2*q, X+2*q, d)
        A("v_cvt_pk_bf16_f32 v%d, v%d, v%d" % (XR+q, X+2*q, X+2*q+1))
        unpack2(A, X+2*q, X+2*q+1, XR+q)
    for c in range(2):
        A("buffer_store_dwordx4 %s, v3, s[36:39], s23 offen offset:%d%s" % (vr(XR+4*c), 16*c, SC))
    stats()
    A("s_waitcnt lgkmcnt(0)")
    apply(4, 3, YR)
    for c in range(2):
        A("buffer_store_dwordx4 %s, v3, s[40:43], s23 offen offset:%d%s" % (vr(YR+4*c), 16*c, SC))
    make_srd(A, 76, 74, 75, WS_GFLAG, 8*128)
    A("s_lshl_b32 s62, s17, 7\ns_and_b32 s63, s2, 31\ns_lshl_b32 s63, s63, 2\ns_add_u32 s63, s63, s62")
    sync_id = [0]
    def publish(val):
        A("s_waitcnt vmcnt(0) lgkmcnt(0)")
        A("s_barrier")
        sid = sync_id[0]; sync_id[0] += 1
        A("s_cmp_eq_u32 s18, 0")
        A("s_cbranch_scc0 %spub%d" % (L, sid))
        A("v_mov_b32 v29, %d\nv_mov_b32 v30, 0" % val)
        A("v_cmp_eq_u32 vcc, 0, v2\ns_and_saveexec_b64 s[60:61], vcc")
        A("buffer_store_dword v29, v30, s[76:79], s63 offen sc0 sc1")
        A("s_mov_b64 exec, s[60:61]")
        A("%spub%d:" % (L, sid))
    def wait_group(val):
        sid = sync_id[0]; sync_id[0] += 1
        A("s_cmp_eq_u32 s18, 0")
        A("s_cbranch_scc0 %swg%d" % (L, sid))
        A("v_and_b32 v29, 31, v2\nv_lshlrev_b32 v29, 2, v29")
        A("%swp%d:" % (L, sid))
        A("buffer_load_dword v30, v29, s[76:79], s62 offen sc0 sc1")
        A("s_waitcnt vmcnt(0)")
        A("v_cmp_gt_u32 vcc, %d, v30" % val)
        A("s_cmp_eq_u64 vcc, 0")
        A("s_cbranch_scc0 %swp%d" % (L, sid))
        A("%swg%d:" % (L, sid))
        A("s_barrier")
    publish(1)
    ts(A, 1)
    A("v_lshrrev_b32 v22, 3, v2\nv_and_b32 v23, 7, v2")
    A("v_xor_b32 v24, v23, v20\nv_lshlrev_b32 v24, 4, v24\nv_lshl_add_u32 v4, v22, 11, v24")
    A("v_xor_b32 v5, 64, v4")
    A("s_lshl_b32 s30, s17, 19\ns_lshl_b32 s21, s18, 16\ns_add_u32 s30, s30, s21")
    A("s_add_u32 s32, s33, 65536")
    A("s_add_u32 s36, s33, %d" % (65536 + 98304))
    make_srd(A, 4, 74, 75, WS_H2, 2048*1024*2)
    make_srd(A, 12, 74, 75, WS_HH, 2048*3584*2)
    ASC = " sc1" if "asc1" not in EXP else ""
    def dmaA_ops():
        ops = []
        for ii in range(4):
            ops.append(["s_add_u32 m0, s32, %d" % (ii*1024),
                        "s_add_u32 s34, s30, %d" % (ii*8*2048),
                        "buffer_load_dwordx4 v%d, s[4:7], s34 offen%s lds" % (4 + (ii & 1), ASC)])
        ops[-1] = ops[-1] + ["s_add_u32 s30, s30, 128", "s_add_u32 s32, s32, 32768", "s_cmp_ge_u32 s32, s36",
                             "s_cselect_b32 s37, 98304, 0", "s_sub_u32 s32, s32, s37"]
        return ops
    A("v_lshrrev_b32 v24, 1, v21\nv_xor_b32 v24, v24, v20\nv_lshlrev_b32 v24, 4, v24\nv_lshl_add_u32 v24, v21, 7, v24")
    A("s_lshl_b32 s21, s19, 13\ns_add_u32 s21, s21, 65536")
    A("v_add_u32 v18, s21, v24")
    A("v_xor_b32 v19, 64, v18")
    A("v_mov_b32 v8, v18\nv_mov_b32 v9, v19")
    A("s_mov_b32 s38, 0\ns_mov_b32 s39, 0")
    A("v_lshrrev_b32 v24, 2, v21\nv_and_b32 v25, 3, v21\nv_and_b32 v26, 1, v20\nv_lshl_or_b32 v26, v26, 2, v24")
    A("v_lshl_add_u32 v27, v20, 3, v24")
    A("v_lshlrev_b32 v27, 8, v27\nv_lshl_add_u32 v27, v25, 3, v27")
    A("s_lshl_b32 s21, s20, 2")
    for slot in range(7):
        if slot < 3:
            A("s_add_u32 s22, s21, %d\ns_mov_b32 s23, 0" % slot)
        elif slot == 3:
            A("s_mov_b32 s22, 3\ns_lshl_b32 s23, s20, 14")
        else:
            A("s_add_u32 s22, s21, %d\ns_mov_b32 s23, 16384" % (slot-4))
        A("v_xor_b32 v24, s22, v26")
        A("v_lshl_add_u32 v24, v24, 5, v27")
        A("v_add_u32 v%d, s23, v24" % (10+slot))
    A("s_mov_b32 s40, %s\ns_mov_b32 s41, %s\ns_mov_b32 s42, 1.0\ns_mov_b32 s43, 1.0" % (LOG2E_NEG, LOG2E_NEG))
    PT, PW, QT, QW, ACC = 32, 48, 76, 92, 128
    def read_ops(setT, setW, buf, kk):
        ops = []
        for tb in range(4):
            ops.append("ds_read_b128 %s, v%d offset:%d" % (vr(setT+4*tb), 8+kk, tb*2048))
        sreg = 38 + kk
        ops[-1] = ops[-1] + "\ns_add_u32 s%d, s%d, 32768\ns_cmp_ge_u32 s%d, 98304\ns_cselect_b32 s%d, 0, s%d\nv_add_u32 v%d, s%d, v%d" % (sreg, sreg, sreg, sreg, sreg, 8+kk, sreg, 18+kk)
        for slot in range(7):
            for h in range(2):
                ops.append("ds_read_b64_tr_b16 %s, v%d offset:%d" % (vr(setW+4*slot+2*h, 2), 10+slot, buf*32768 + (32*kk+4*h)*256))
        return ops
    def mfma_ops(setT, setW):
        ops = []
        for slot in range(7):
            for tb in range(4):
                a = ACC + (slot*4+tb)*4
                ops.append("v_mfma_f32_16x16x32_bf16 %s, %s, %s, %s" % (vr(a), vr(setW+4*slot), vr(setT+4*tb), vr(a)))
        return ops
    def interleave(mf, fill):
        for i, m in enumerate(mf):
            A(m)
            for x in fill.get(i, []):
                A(x)
    for i in range(112):
        A("v_mov_b32 v%d, 0" % (ACC+i))
    wait_group(1)
    ts(A, 2)
    emit(dmaA_ops()); emit(dmaA_ops())
    A("s_waitcnt vmcnt(4)")
    A("s_barrier")
    for x in read_ops(PT, PW, 0, 0): A(x)
    def stage(buf, dmaB, dmaA, do_next, vm, extraA=False, xextra=None):
        A("s_waitcnt lgkmcnt(0)")
        rd = read_ops(QT, QW, buf, 1)
        fill = {}
        for i, r in enumerate(rd):
            fill.setdefault(i, []).append(r)
        if extraA:
            for i, g in enumerate(dmaA_ops()):
                fill.setdefault(2 + 3*i, []).extend(g)
        interleave(mfma_ops(PT, PW), fill)
        A("s_waitcnt vmcnt(%d) lgkmcnt(0)" % vm)
        A("s_barrier")
        fill = {}
        rd = read_ops(PT, PW, buf ^ 1, 0) if do_next else []
        dB = dmaB_ops(buf) if dmaB else []
        dA = dmaA_ops() if dmaA else []
        for i, r in enumerate(rd):
            fill.setdefault(i, []).append(r)
        for i, g in enumerate(dB + dA + (xextra or [])):
            fill.setdefault(1 + 3*i, []).extend(g)
        interleave(mfma_ops(QT, QW), fill)
    def g2_setup():
        o = []
        o.append("s_and_b32 s47, s2, 7")
        o.append("s_lshr_b32 s21, s2, 3\ns_and_b32 s21, s21, 3")
        o.append("s_and_b32 s44, s21, 1")
        o.append("s_lshr_b32 s21, s21, 1\ns_lshl_b32 s46, s17, 1\ns_add_u32 s46, s46, s21")
        o.append("s_cmp_eq_u32 s44, 0\ns_cselect_b32 s48, %d, %d\ns_cselect_b32 s49, 0, %d" % (K0, 56-K0, K0))
        o.append("s_and_b32 s21, s18, 1\ns_lshl_b32 s21, s21, 2")
        o.append("v_or_b32 v24, s21, v20\nv_lshrrev_b32 v25, 1, v21\nv_xor_b32 v24, v24, v25\nv_and_b32 v25, 1, v21")
        o.append("v_lshlrev_b32 v24, 5, v24\nv_lshl_add_u32 v24, v25, 4, v24\nv_lshl_add_u32 v31, v20, 11, v24")
        o.append("s_lshl_b32 s21, s49, 17\ns_lshl_b32 s22, s18, 14\ns_add_u32 s51, s21, s22\ns_lshl_b32 s21, s47, 8\ns_add_u32 s51, s51, s21")
        o.append("s_mov_b32 s52, s66\ns_mov_b32 s53, s67\ns_mov_b32 s54, %d\ns_mov_b32 s55, 0x00020000" % (3584*1024*2))
        o.append("s_lshl_b32 s50, s18, 11")
        return o
    def g2_B_prologue():
        ops = []
        for st in range(4):
            ops.append(["s_add_u32 m0, s50, %d" % (st*16384), "s_add_u32 s34, s51, %d" % (st*64*2048), "buffer_load_dwordx4 v31, s[52:55], s34 offen lds"])
            ops.append(["s_add_u32 m0, s50, %d" % (st*16384+1024), "s_add_u32 s34, s51, %d" % (st*64*2048+8192), "buffer_load_dwordx4 v31, s[52:55], s34 offen lds"])
        ops[0] = g2_setup() + ops[0]
        return ops
    stage(0, True, True, True, 4, True)
    stage(1, True, True, True, 4)
    A("s_mov_b32 s35, 0")
    A("%sloop1:" % L)
    stage(0, True, True, True, 4)
    stage(1, True, True, True, 4)
    A("s_add_u32 s35, s35, 1")
    A("s_cmp_lt_u32 s35, 5")
    A("s_cbranch_scc1 %sloop1" % L)
    stage(0, True, True, True, 4)
    stage(1, True, False, True, 4)
    stage(0, False, False, True, 0)
    stage(1, False, False, False, 0, False, g2_B_prologue())
    ts(A, 3)
    A("v_lshlrev_b32 v24, 7, v0\nv_cmp_gt_u32 vcc, 224, v0\nv_mov_b32 v25, 0x80000000\ns_mul_i32 s21, s2, 28672\nv_cndmask_b32 v24, v25, v24, vcc")
    A("buffer_load_dword v30, v24, s[52:55], s21 offen")
    A("s_nop 3")
    XB = 131072
    A("v_lshlrev_b32 v24, 4, v2")
    A("s_lshl_b32 s21, s18, 11\ns_add_u32 s21, s21, %d" % XB)
    A("v_add_u32 v25, s21, v24")
    A("s_xor_b32 s21, s18, 4\ns_lshl_b32 s21, s21, 11\ns_add_u32 s21, s21, %d" % XB)
    A("v_add_u32 v26, s21, v24")
    s3 = ACC + 12*4
    A("s_cmp_eq_u32 s20, 0")
    A("s_cbranch_scc0 %sx1" % L)
    A("ds_write_b128 v25, %s" % vr(s3+8))
    A("ds_write_b128 v25, %s offset:1024" % vr(s3+12))
    A("s_branch %sx2" % L)
    A("%sx1:" % L)
    A("ds_write_b128 v25, %s" % vr(s3))
    A("ds_write_b128 v25, %s offset:1024" % vr(s3+4))
    A("%sx2:" % L)
    A("s_waitcnt lgkmcnt(0)")
    A("s_barrier")
    A("ds_read_b128 v[32:35], v26")
    A("ds_read_b128 v[36:39], v26 offset:1024")
    A("v_and_b32 v24, 1, v20\nv_lshl_add_u32 v24, v24, 4, v21\nv_lshlrev_b32 v24, 5, v24")
    A("v_lshrrev_b32 v25, 1, v20\nv_lshl_add_u32 v27, v25, 4, v24")
    A("s_mul_i32 s21, s17, 224\ns_mul_i32 s22, s16, 7\ns_add_u32 s21, s21, s22\ns_lshl_b32 s21, s21, 13")
    A("s_lshl_b32 s22, s19, 11\ns_add_u32 s21, s21, s22")
    A("s_lshl_b32 s22, s20, 15\ns_add_u32 s22, s22, s21")
    T1 = 40; O = 60
    cnt = [0]
    def pair(g0, u0, g1, u1, soff_expr):
        o = O + 4*(cnt[0] % 4); t = T1 + 8*(cnt[0] % 2); cnt[0] += 1
        emit_swiglu(A, g0, u0, o, t)
        emit_swiglu(A, g1, u1, o+2, t+4)
        A(soff_expr)
        A("s_nop 0")
        A("v_permlane16_swap_b32 v%d, v%d" % (o, o+2))
        A("v_permlane16_swap_b32 v%d, v%d" % (o+1, o+3))
        A("buffer_store_dwordx4 %s, v27, s[12:15], s23 offen%s" % (vr(o), SC))
    for j in range(3):
        for tp in range(2):
            tb = 2*tp
            g = ACC + (j*4+tb)*4
            u = ACC + ((j+4)*4+tb)*4
            pair(g, u, g+4, u+4, "s_add_u32 s23, s22, %d" % (j*8192 + tb*512))
    A("s_waitcnt lgkmcnt(0)")
    A("s_cmp_eq_u32 s20, 0")
    A("s_cbranch_scc0 %sy1" % L)
    pair(s3, 32, s3+4, 36, "s_add_u32 s23, s21, %d" % (3*8192))
    A("s_branch %sy2" % L)
    A("%sy1:" % L)
    pair(32, s3+8, 36, s3+12, "s_add_u32 s23, s21, %d" % (3*8192 + 2*512))
    A("%sy2:" % L)
    publish(2)
    ts(A, 4)
    A("s_lshl_b32 s45, s46, 3\ns_add_u32 s45, s45, s47")
    A("s_and_b32 s19, s18, 1")
    A("s_lshr_b32 s20, s18, 1")
    A("v_lshrrev_b32 v22, 3, v2\nv_and_b32 v23, 7, v2")
    for (dst, fx) in ((4, 0), (5, 4)):
        A("v_xor_b32 v24, v23, v20")
        if fx: A("v_xor_b32 v24, 4, v24")
        A("v_lshrrev_b32 v25, 1, v24\nv_and_b32 v24, 1, v24")
        A("v_lshlrev_b32 v25, 13, v25\nv_lshl_add_u32 v25, v22, 5, v25\nv_lshl_add_u32 v%d, v24, 4, v25" % dst)
    A("s_lshr_b32 s21, s46, 1\ns_mul_i32 s21, s21, 224\ns_lshl_b32 s22, s49, 2\ns_add_u32 s21, s21, s22\ns_lshl_b32 s30, s21, 13")
    A("s_and_b32 s21, s46, 1\ns_lshl_b32 s21, s21, 12\ns_add_u32 s30, s30, s21\ns_lshl_b32 s21, s18, 9\ns_add_u32 s30, s30, s21")
    make_srd(A, 4, 74, 75, WS_HH, 2048*3584*2)
    A("v_lshrrev_b32 v24, 1, v21\nv_xor_b32 v24, v24, v20\nv_lshlrev_b32 v24, 4, v24\nv_lshl_add_u32 v24, v21, 7, v24")
    A("s_lshl_b32 s21, s19, 13\ns_add_u32 s21, s21, 65536")
    A("v_add_u32 v14, s21, v24")
    A("v_xor_b32 v15, 64, v14")
    A("v_lshrrev_b32 v24, 2, v21\nv_and_b32 v25, 3, v21\nv_and_b32 v26, 1, v20\nv_lshl_or_b32 v26, v26, 2, v24")
    A("v_lshl_add_u32 v27, v20, 3, v24")
    A("v_lshlrev_b32 v27, 8, v27\nv_lshl_add_u32 v27, v25, 3, v27")
    A("s_lshl_b32 s21, s20, 1")
    for j in range(2):
        A("s_add_u32 s22, s21, %d" % j)
        A("v_xor_b32 v24, s22, v26")
        A("v_lshl_add_u32 v%d, v24, 5, v27" % (16+j))
    A("s_mov_b32 s38, 0\ns_mov_b32 s39, 0")
    PT2, PW2, QT2, QW2, ACC2 = 32, 48, 56, 72, 96
    for i in range(32):
        A("v_mov_b32 v%d, 0" % (ACC2+i))
    make_srd(A, 12, 74, 75, WS_PART, 128*65536)
    make_srd(A, 24, 74, 75, WS_FLAG, 128*128)
    A("v_lshlrev_b32 v24, 4, v2")
    A("s_lshl_b32 s36, s45, 16\ns_lshl_b32 s22, s18, 13\ns_add_u32 s36, s36, s22")
    A("s_lshl_b32 s37, s45, 7")
    A("v_mov_b32 v25, 0")
    A("s_sub_u32 s56, s48, 4")
    A("s_add_u32 s51, s51, %d" % (4*64*2048))
    A("s_mov_b32 s32, 0")
    wait_group(2)
    ts(A, 5)
    for st in range(4):
        A("s_add_u32 m0, s50, %d" % (65536 + st*16384))
        A("s_add_u32 s34, s30, %d" % (st*32768))
        A("buffer_load_dwordx4 v4, s[4:7], s34 offen%s lds" % ASC)
        A("s_add_u32 m0, s50, %d" % (65536 + st*16384 + 1024))
        A("s_add_u32 s34, s30, %d" % (st*32768 + 256))
        A("buffer_load_dwordx4 v5, s[4:7], s34 offen%s lds" % ASC)
    A("s_add_u32 s30, s30, %d" % (4*32768))
    def dma2_ops():
        ops = []
        ops.append(["s_add_u32 s57, s50, s32", "s_add_u32 m0, s57, 65536", "s_nop 0", "buffer_load_dwordx4 v4, s[4:7], s30 offen%s lds" % ASC])
        ops.append(["s_add_u32 m0, s57, %d" % (65536+1024), "s_add_u32 s34, s30, 256", "buffer_load_dwordx4 v5, s[4:7], s34 offen%s lds" % ASC])
        ops.append(["s_add_u32 m0, s57, 0", "s_nop 0", "buffer_load_dwordx4 v31, s[52:55], s51 offen lds"])
        ops.append(["s_add_u32 m0, s57, 1024", "s_add_u32 s34, s51, 8192", "buffer_load_dwordx4 v31, s[52:55], s34 offen lds",
                    "s_add_u32 s30, s30, 32768", "s_add_u32 s51, s51, %d" % (64*2048),
                    "s_add_u32 s32, s32, 16384", "s_and_b32 s32, s32, 0xffff"])
        return ops
    def read2_ops(setT, setW, kk):
        sreg = 38 + kk
        vt = 8 + kk; vw = 10 + 2*kk
        ops = []
        pre = "v_add_u32 v%d, s%d, v%d\nv_add_u32 v%d, s%d, v16\nv_add_u32 v%d, s%d, v17\n" % (vt, sreg, 14+kk, vw, sreg, vw+1, sreg)
        pre += "s_add_u32 s%d, s%d, 16384\ns_and_b32 s%d, s%d, 0xffff\n" % (sreg, sreg, sreg, sreg)
        for tb in range(4):
            ops.append((pre if tb == 0 else "") + "ds_read_b128 %s, v%d offset:%d" % (vr(setT+4*tb), vt, tb*2048))
        for j in range(2):
            for h in range(2):
                ops.append("ds_read_b64_tr_b16 %s, v%d offset:%d" % (vr(setW+4*j+2*h, 2), vw+j, (32*kk+4*h)*256))
        return ops
    def mfma2_ops(setT, setW):
        ops = []
        for j in range(2):
            for tb in range(4):
                a = ACC2 + (j*4+tb)*4
                ops.append("v_mfma_f32_16x16x32_bf16 %s, %s, %s, %s" % (vr(a), vr(setW+4*j), vr(setT+4*tb), vr(a)))
        return ops
    A("s_waitcnt vmcnt(6)")
    A("s_barrier")
    for x in read2_ops(PT2, PW2, 0): A(x)
    PR = 160
    def e_issue():
        make_srd(A, 40, 74, 75, WS_X1, 2048*1024*2)
        make_srd(A, 8, 74, 75, WS_MOD + 5*4096, 24576+4096)
        A("s_lshl_b32 s23, s47, 9\ns_lshl_b32 s34, s20, 7\ns_add_u32 s23, s23, s34")
        A("v_lshlrev_b32 v26, 4, v20")
        A("buffer_load_dwordx4 v[128:131], v26, s[8:11], s23 offen")
        A("buffer_load_dwordx4 v[132:135], v26, s[8:11], s23 offen offset:64")
        A("s_add_u32 s23, s23, 24576")
        A("buffer_load_dwordx4 v[136:139], v26, s[8:11], s23 offen")
        A("buffer_load_dwordx4 v[140:143], v26, s[8:11], s23 offen offset:64")
        A("v_and_b32 v26, 1, v20\nv_lshl_add_u32 v26, v26, 4, v21\nv_lshlrev_b32 v26, 11, v26")
        A("v_lshrrev_b32 v27, 1, v20\nv_lshl_add_u32 v27, v27, 4, v26")
        A("s_lshl_b32 s23, s46, 18\ns_lshl_b32 s34, s19, 17\ns_add_u32 s23, s23, s34\ns_lshl_b32 s34, s47, 8\ns_add_u32 s23, s23, s34\ns_lshl_b32 s34, s20, 6\ns_add_u32 s58, s23, s34")
        idx = 0
        for j in range(2):
            for tp in range(2):
                A("s_add_u32 s23, s58, %d" % (tp*32*2048))
                A("buffer_load_dwordx4 %s, v27, s[40:43], s23 offen offset:%d%s" % (vr(144+4*idx), j*32, SC))
                idx += 1
    def step(vm, dma, extra_x=None):
        A("s_waitcnt lgkmcnt(0)")
        rd = read2_ops(QT2, QW2, 1)
        fill = {}
        for i, r in enumerate(rd):
            fill.setdefault(i // 2, []).append(r)
        interleave(mfma2_ops(PT2, PW2), fill)
        if vm is not None: A("s_waitcnt vmcnt(%d) lgkmcnt(0)" % vm)
        else: A("s_waitcnt lgkmcnt(0)")
        A("s_barrier")
        if extra_x: extra_x()
        fill = {}
        rd = read2_ops(PT2, PW2, 0)
        for i, r in enumerate(rd):
            fill.setdefault(i // 2, []).append(r)
        if dma:
            for i, gg in enumerate(dma2_ops()):
                fill.setdefault(4 + i, []).extend(gg)
        interleave(mfma2_ops(QT2, QW2), fill)
    step(4, True)
    step(6, True)
    A("s_mov_b32 s35, 2")
    A("%sloop2:" % L)
    step(8, True)
    A("s_add_u32 s35, s35, 1")
    A("s_cmp_lt_u32 s35, s56")
    A("s_cbranch_scc1 %sloop2" % L)
    def poll_issue():
        A("buffer_load_dword v28, v25, s[24:27], s37 offen sc0 sc1")
    def part_issue():
        A("s_cmp_eq_u32 s44, 0")
        A("s_cbranch_scc1 %snopart" % L)
        A("s_waitcnt vmcnt(0)")
        A("%spoll:" % L)
        A("v_readfirstlane_b32 s34, v28")
        A("s_cmp_eq_u32 s34, 1")
        A("s_cbranch_scc1 %sgot" % L)
        A("s_sleep 1")
        A("buffer_load_dword v28, v25, s[24:27], s37 offen sc0 sc1")
        A("s_waitcnt vmcnt(0)")
        A("s_branch %spoll" % L)
        A("%sgot:" % L)
        for i in range(8):
            A("s_add_u32 s23, s36, %d" % (i*1024))
            A("buffer_load_dwordx4 %s, v24, s[12:15], s23 offen sc0 sc1" % vr(PR+4*i))
        A("%snopart:" % L)
    step(8, False, e_issue)
    step(12, False, poll_issue)
    step(9, False, part_issue)
    step(None, False)
    A("s_waitcnt lgkmcnt(0)")
    A("s_nop 7")
    A("s_cmp_eq_u32 s44, 0")
    A("s_cbranch_scc0 %slate" % L)
    for i in range(8):
        A("s_add_u32 s23, s36, %d" % (i*1024))
        A("buffer_store_dwordx4 %s, v24, s[12:15], s23 offen sc0 sc1" % vr(ACC2+4*i))
    A("s_waitcnt vmcnt(0)")
    A("s_barrier")
    A("s_cmp_eq_u32 s18, 0")
    A("s_cbranch_scc0 %sfin" % L)
    A("v_mov_b32 v26, 1")
    A("v_cmp_eq_u32 vcc, 0, v2")
    A("s_and_saveexec_b64 s[60:61], vcc")
    A("buffer_store_dword v26, v25, s[24:27], s37 offen sc0 sc1")
    A("s_waitcnt vmcnt(0)")
    A("s_mov_b64 exec, s[60:61]")
    A("s_branch %sfin" % L)
    A("%slate:" % L)
    for r in range(8): A("v_add_f32 v%d, v%d, v%d" % (32+r, 128+r, 136+r))
    for r in range(0, 8, 2): rnd2(A, 32+r, 33+r, 28)
    XR2 = 144
    make_srd(A, 12, 72, 73, 0, 2048*1024*2)
    idx = 0
    for j in range(2):
        for tp in range(2):
            o = 56 + 4*(idx % 2)
            for t in range(2):
                tb = 2*tp + t
                a = ACC2 + (j*4+tb)*4
                p = PR + (j*4+tb)*4
                A("s_waitcnt vmcnt(%d)" % (7 - (j*4+tb) + idx))
                for r in range(4):
                    A("v_add_f32 v%d, v%d, v%d" % (a+r, a+r, p+r))
                rnd2(A, a, a+1, p); rnd2(A, a+2, a+3, p+1)
                for r in range(4):
                    A("v_mul_f32 v%d, v%d, v%d" % (a+r, a+r, 32+4*j+r))
                A("v_cvt_pk_bf16_f32 v%d, v%d, v%d" % (o+2*t, a, a+1))
                A("v_cvt_pk_bf16_f32 v%d, v%d, v%d" % (o+2*t+1, a+2, a+3))
            A("s_nop 1")
            A("v_permlane16_swap_b32 v%d, v%d" % (o, o+2))
            A("v_permlane16_swap_b32 v%d, v%d" % (o+1, o+3))
            x = XR2 + 4*idx
            a = ACC2 + (j*4+2*tp)*4
            for d in range(4):
                unpack2(A, a+2*d, a+2*d+1, o+d)
                unpack2(A, 28, 29, x+d)
                A("v_add_f32 v%d, v%d, v28\nv_add_f32 v%d, v%d, v29" % (a+2*d, a+2*d, a+2*d+1, a+2*d+1))
                A("v_cvt_pk_bf16_f32 v%d, v%d, v%d" % (x+d, a+2*d, a+2*d+1))
            A("s_add_u32 s23, s58, %d" % (tp*32*2048))
            A("buffer_store_dwordx4 %s, v27, s[12:15], s23 offen offset:%d" % (vr(x), j*32))
            idx += 1
    A("%sfin:" % L)
    ts_dump(A, 6, L+"end", wg=int(os.environ.get("TSWG", "13")))
    A("%send:" % L)
    A("s_endpgm")
    return name
```

```python
from asmlib import *
import os
EXP = os.environ.get("EXP", "")
LOG2E_NEG = "0xbfb8aa3b"
LDS = 163840
PD = int(os.environ.get("PD", "4"))
VGPR = 240

def emit_swiglu(A, g, u, out, t):
    rnd2(A, g, g+1, t); rnd2(A, g+2, g+3, t+1)
    rnd2(A, u, u+1, t+2); rnd2(A, u+2, u+3, t+3)
    A("v_pk_mul_f32 %s, %s, s[40:41]" % (vr(t, 2), vr(g, 2)))
    A("v_pk_mul_f32 %s, %s, s[40:41]" % (vr(t+2, 2), vr(g+2, 2)))
    for i in range(4):
        A("v_exp_f32 v%d, v%d" % (t+i, t+i))
    A("s_nop 0")
    A("v_pk_add_f32 %s, %s, s[42:43]" % (vr(t, 2), vr(t, 2)))
    A("v_pk_add_f32 %s, %s, s[42:43]" % (vr(t+2, 2), vr(t+2, 2)))
    for i in range(4):
        A("v_rcp_f32 v%d, v%d" % (t+i, t+i))
    A("s_nop 0")
    A("v_pk_mul_f32 %s, %s, %s" % (vr(g, 2), vr(g, 2), vr(t, 2)))
    A("v_pk_mul_f32 %s, %s, %s" % (vr(g+2, 2), vr(g+2, 2), vr(t+2, 2)))
    rnd2(A, g, g+1, t); rnd2(A, g+2, g+3, t+1)
    A("v_pk_mul_f32 %s, %s, %s" % (vr(g, 2), vr(g, 2), vr(u, 2)))
    A("v_pk_mul_f32 %s, %s, %s" % (vr(g+2, 2), vr(g+2, 2), vr(u+2, 2)))
    A("v_cvt_pk_bf16_f32 v%d, v%d, v%d" % (out, g, g+1))
    A("v_cvt_pk_bf16_f32 v%d, v%d, v%d" % (out+1, g+2, g+3))

def gen_gemm1(A, name="gemm1_kernel"):
    kernel_head(A, name)
    L = "Lg1_"
    A("s_cmp_ge_u32 s2, 256")
    A("s_cbranch_scc1 %send" % L)
    if "ts" in EXP: A("s_memtime s[60:61]\ns_memrealtime s[80:81]\ns_load_dwordx2 s[70:71], s[0:1], 104")
    A("s_load_dwordx4 s[24:27], s[0:1], 56")
    A("s_load_dwordx2 s[28:29], s[0:1], 112")
    A("s_load_dwordx2 s[44:45], s[0:1], 72")
    A("v_lshrrev_b32 v1, 6, v0")
    A("v_and_b32 v2, 63, v0")
    A("v_readfirstlane_b32 s18, v1")
    A("s_and_b32 s16, s2, 7\ns_lshl_b32 s16, s16, 2\ns_lshr_b32 s17, s2, 3\ns_and_b32 s17, s17, 3\ns_add_u32 s16, s16, s17")
    A("s_lshr_b32 s17, s2, 5")
    A("s_and_b32 s19, s18, 3")
    A("s_lshr_b32 s20, s18, 2")
    A("v_lshrrev_b32 v20, 4, v2")
    A("v_and_b32 v21, 15, v2")
    A("v_lshrrev_b32 v22, 3, v2")
    A("v_and_b32 v23, 7, v2")
    A("v_xor_b32 v24, v23, v20\nv_lshlrev_b32 v24, 4, v24\nv_lshl_add_u32 v4, v22, 11, v24")
    A("v_xor_b32 v5, 64, v4")
    A("v_lshrrev_b32 v24, 1, v21\nv_and_b32 v25, 1, v21")
    A("s_movk_i32 s21, 7168")
    A("v_mul_lo_u32 v26, v20, s21")
    A("v_lshl_add_u32 v26, v25, 4, v26")
    A("v_mov_b32 v28, 0x80000000")
    for (dst, fx) in ((6, 0), (7, 4)):
        A("v_xor_b32 v27, v24, v20")
        if fx: A("v_xor_b32 v27, %d, v27" % fx)
        A("v_cmp_ne_u32 vcc, 7, v27")
        A("v_lshl_add_u32 v27, v27, 5, v26")
        A("s_nop 1")
        A("v_cndmask_b32 v%d, v28, v27, vcc" % dst)
    A("s_lshl_b32 s30, s17, 19\ns_lshl_b32 s21, s18, 16\ns_add_u32 s30, s30, s21")
    A("s_mul_i32 s31, s16, 224\ns_mul_i32 s21, s19, %d\ns_add_u32 s31, s31, s21" % (16*7168))
    A("s_lshl_b32 s33, s18, 12")
    A("s_add_u32 s32, s33, 65536")
    A("s_add_u32 s36, s33, %d" % (65536 + 98304))
    A("s_waitcnt lgkmcnt(0)")
    if "ts2" in EXP: A("s_memtime s[84:85]")
    make_srd(A, 4, 28, 29, WS_H2, 2048*1024*2)
    A("s_cmp_eq_u32 s20, 0")
    A("s_cselect_b32 s8, s24, s26")
    A("s_cselect_b32 s9, s25, s27")
    A("s_mov_b32 s10, %d" % (1024*3584*2))
    A("s_mov_b32 s11, 0x00020000")

    def dmaA_ops():
        ops = []
        for ii in range(4):
            ops.append(["s_add_u32 m0, s32, %d" % (ii*1024),
                        "s_add_u32 s34, s30, %d" % (ii*8*2048),
                        "buffer_load_dwordx4 v%d, s[4:7], s34 offen lds" % (4 + (ii & 1))])
        ops[-1] = ops[-1] + ["s_add_u32 s30, s30, 128", "s_add_u32 s32, s32, 32768", "s_cmp_ge_u32 s32, s36",
                             "s_cselect_b32 s37, 98304, 0", "s_sub_u32 s32, s32, s37"]
        return ops
    def dmaB_ops(buf):
        ops = []
        for jj in range(4):
            ops.append(["s_add_u32 m0, s33, %d" % (buf*32768 + jj*1024),
                        "s_add_u32 s34, s31, %d" % (jj*4*7168),
                        "buffer_load_dwordx4 v%d, s[8:11], s34 offen lds" % (6 + (jj >> 1))])
        ops[-1] = ops[-1] + ["s_add_u32 s31, s31, %d" % (64*7168)]
        return ops
    def emit(groups):
        for g in groups:
            for x in g: A(x)
    emit(dmaB_ops(0)); emit(dmaA_ops())
    A("s_barrier")
    emit(dmaB_ops(1)); emit(dmaA_ops())

    if "ts2" in EXP: A("s_memtime s[86:87]\ns_waitcnt vmcnt(19)\ns_memtime s[88:89]\ns_waitcnt vmcnt(16)\ns_memtime s[90:91]")
    make_srd(A, 12, 28, 29, WS_HH, 2048*3584*2)
    A("v_lshrrev_b32 v24, 1, v21\nv_xor_b32 v24, v24, v20\nv_lshlrev_b32 v24, 4, v24\nv_lshl_add_u32 v24, v21, 7, v24")
    A("s_lshl_b32 s21, s19, 13\ns_add_u32 s21, s21, 65536")
    A("v_add_u32 v18, s21, v24")
    A("v_xor_b32 v19, 64, v18")
    A("v_mov_b32 v8, v18\nv_mov_b32 v9, v19")
    A("s_mov_b32 s38, 0\ns_mov_b32 s39, 0")
    A("v_lshrrev_b32 v24, 2, v21\nv_and_b32 v25, 3, v21\nv_and_b32 v26, 1, v20\nv_lshl_or_b32 v26, v26, 2, v24")
    A("v_lshl_add_u32 v27, v20, 3, v24")
    A("v_lshlrev_b32 v27, 8, v27\nv_lshl_add_u32 v27, v25, 3, v27")
    A("s_lshl_b32 s21, s20, 2")
    for slot in range(7):
        if slot < 3:
            A("s_add_u32 s22, s21, %d\ns_mov_b32 s23, 0" % slot)
        elif slot == 3:
            A("s_mov_b32 s22, 3\ns_lshl_b32 s23, s20, 14")
        else:
            A("s_add_u32 s22, s21, %d\ns_mov_b32 s23, 16384" % (slot-4))
        A("v_xor_b32 v24, s22, v26")
        A("v_lshl_add_u32 v24, v24, 5, v27")
        A("v_add_u32 v%d, s23, v24" % (10+slot))
    A("s_mov_b32 s40, %s\ns_mov_b32 s41, %s\ns_mov_b32 s42, 1.0\ns_mov_b32 s43, 1.0" % (LOG2E_NEG, LOG2E_NEG))
    A("v_mul_u32_u24 v24, 21846, v2\nv_lshrrev_b32 v24, 16, v24")
    A("v_mul_u32_u24 v25, 3, v24\nv_sub_u32 v25, v2, v25")
    A("s_movk_i32 s21, 7168\nv_mul_lo_u32 v24, v24, s21\nv_lshl_add_u32 v24, v25, 7, v24")
    A("s_cmp_eq_u32 s19, 0\ns_cselect_b32 s21, 24, 0")
    A("v_cmp_gt_u32 vcc, s21, v2\nv_mov_b32 v25, 0x80000000\ns_nop 1\nv_cndmask_b32 v31, v25, v24, vcc")
    A("s_mul_i32 s46, s16, 224\ns_and_b32 s46, s46, 0xffffff80\ns_mul_i32 s21, s17, %d\ns_add_u32 s46, s46, s21\ns_add_u32 s46, s46, %d" % (8*7168, PD*64*7168))

    PT, PW, QT, QW, ACC = 32, 48, 76, 92, 128
    def read_ops(setT, setW, buf, kk):
        ops = []
        if "nords" in EXP: return ops
        for tb in range(4):
            ops.append("ds_read_b128 %s, v%d offset:%d" % (vr(setT+4*tb), 8+kk, tb*2048))
        sreg = 38 + kk
        ops[-1] = ops[-1] + "\ns_add_u32 s%d, s%d, 32768\ns_cmp_ge_u32 s%d, 98304\ns_cselect_b32 s%d, 0, s%d\nv_add_u32 v%d, s%d, v%d" % (sreg, sreg, sreg, sreg, sreg, 8+kk, sreg, 18+kk)
        for slot in range(7):
            for h in range(2):
                ops.append("ds_read_b64_tr_b16 %s, v%d offset:%d" % (vr(setW+4*slot+2*h, 2), 10+slot, buf*32768 + (32*kk+4*h)*256))
        return ops
    def mfma_ops(setT, setW):
        ops = []
        for slot in range(7):
            for tb in range(4):
                a = ACC + (slot*4+tb)*4
                ops.append("v_mfma_f32_16x16x32_bf16 %s, %s, %s, %s" % (vr(a), vr(setW+4*slot), vr(setT+4*tb), vr(a)))
        return ops
    def interleave(mf, fill):
        for i, m in enumerate(mf):
            if "nomfma" not in EXP: A(m)
            for x in fill.get(i, []):
                A(x)

    for i in range(112):
        A("v_mov_b32 v%d, 0" % (ACC+i))
    A("s_waitcnt vmcnt(8)")
    A("s_barrier")
    if "ts" in EXP: A("s_memtime s[62:63]")
    for x in read_ops(PT, PW, 0, 0): A(x)

    def stage(buf, dmaB, dmaA, do_next, vm, extraA=False, touch=False):
        A("s_waitcnt lgkmcnt(0)")
        rd = read_ops(QT, QW, buf, 1)
        fill = {}
        RPG = int(os.environ.get("RPG", "1"))
        for i, r in enumerate(rd):
            fill.setdefault(i // RPG, []).append(r)
        if extraA:
            for i, g in enumerate(dmaA_ops()):
                fill.setdefault(10 + 2*i, []).extend(g)
        interleave(mfma_ops(PT, PW), fill)
        A("s_waitcnt vmcnt(%d) lgkmcnt(0)" % vm)
        A("s_barrier")
        fill = {}
        rd = read_ops(PT, PW, buf ^ 1, 0) if do_next else []
        dB = dmaB_ops(buf) if (dmaB and "nodma" not in EXP) else []
        dA = dmaA_ops() if (dmaA and "nodma" not in EXP) else []
        if RPG == 2:
            gap = 0
            for g in dB:
                fill.setdefault(gap, []).extend(g); gap += 1
            for i, r in enumerate(rd):
                fill.setdefault(gap + i // 2, []).append(r)
            gap += (len(rd) + 1) // 2
            for g in dA:
                fill.setdefault(gap, []).extend(g); gap += 2
        else:
            for i, r in enumerate(rd):
                fill.setdefault(i, []).append(r)
            for i, g in enumerate(dB + dA):
                fill.setdefault(1 + 3*i, []).extend(g)
            if touch:
                fill.setdefault(25, []).extend(["buffer_load_dword v30, v31, s[8:11], s46 offen", "s_add_u32 s46, s46, %d" % (64*7168)])
        interleave(mfma_ops(QT, QW), fill)

    TCH = PD > 0
    V5 = 5 if TCH else 4
    stage(0, True, True, True, 4, True, TCH)
    stage(1, True, True, True, V5, False, TCH)
    A("s_mov_b32 s35, 0")
    A("%sloop:" % L)
    stage(0, True, True, True, V5, False, TCH)
    stage(1, True, True, True, V5, False, TCH)
    A("s_add_u32 s35, s35, 1")
    A("s_cmp_lt_u32 s35, 5")
    A("s_cbranch_scc1 %sloop" % L)
    stage(0, True, True, True, V5)
    stage(1, True, False, True, 4)
    stage(0, False, False, True, 0)
    stage(1, False, False, False, 0)

    if "ts" in EXP: A("s_memtime s[64:65]")
    make_srd(A, 48, 44, 45, 0, 3584*1024*2)
    A("v_lshlrev_b32 v24, 7, v0\nv_cmp_gt_u32 vcc, 224, v0\nv_mov_b32 v25, 0x80000000\ns_mul_i32 s21, s2, 28672\nv_cndmask_b32 v24, v25, v24, vcc")
    A("buffer_load_dword v30, v24, s[48:51], s21 offen")
    A("s_nop 3")
    A("v_lshlrev_b32 v24, 4, v2")
    A("s_lshl_b32 s21, s18, 11")
    A("v_add_u32 v25, s21, v24")
    A("s_xor_b32 s21, s18, 4\ns_lshl_b32 s21, s21, 11")
    A("v_add_u32 v26, s21, v24")
    s3 = ACC + 12*4
    A("s_cmp_eq_u32 s20, 0")
    A("s_cbranch_scc0 %sx1" % L)
    A("ds_write_b128 v25, %s" % vr(s3+8))
    A("ds_write_b128 v25, %s offset:1024" % vr(s3+12))
    A("s_branch %sx2" % L)
    A("%sx1:" % L)
    A("ds_write_b128 v25, %s" % vr(s3))
    A("ds_write_b128 v25, %s offset:1024" % vr(s3+4))
    A("%sx2:" % L)
    A("s_waitcnt lgkmcnt(0)")
    A("s_barrier")
    A("ds_read_b128 v[32:35], v26")
    A("ds_read_b128 v[36:39], v26 offset:1024")
    A("v_and_b32 v24, 1, v20\nv_lshl_add_u32 v24, v24, 4, v21\nv_lshlrev_b32 v24, 5, v24")
    A("v_lshrrev_b32 v25, 1, v20\nv_lshl_add_u32 v27, v25, 4, v24")
    A("s_mul_i32 s21, s17, 224\ns_mul_i32 s22, s16, 7\ns_add_u32 s21, s21, s22\ns_lshl_b32 s21, s21, 13")
    A("s_lshl_b32 s22, s19, 11\ns_add_u32 s21, s21, s22")
    A("s_lshl_b32 s22, s20, 15\ns_add_u32 s22, s22, s21")
    T = 40
    O = 60
    cnt = 0
    def pair(g0, u0, g1, u1, soff_expr):
        nonlocal cnt
        o = O + 4*(cnt % 4); t = T + 8*(cnt % 2); cnt += 1
        emit_swiglu(A, g0, u0, o, t)
        emit_swiglu(A, g1, u1, o+2, t+4)
        A(soff_expr)
        A("s_nop 0")
        A("v_permlane16_swap_b32 v%d, v%d" % (o, o+2))
        A("v_permlane16_swap_b32 v%d, v%d" % (o+1, o+3))
        A("buffer_store_dwordx4 %s, v27, s[12:15], s23 offen" % vr(o))
    for j in range(3):
        for tp in range(2):
            tb = 2*tp
            g = ACC + (j*4+tb)*4
            u = ACC + ((j+4)*4+tb)*4
            pair(g, u, g+4, u+4, "s_add_u32 s23, s22, %d" % (j*8192 + tb*512))
    A("s_waitcnt lgkmcnt(0)")
    A("s_cmp_eq_u32 s20, 0")
    A("s_cbranch_scc0 %sy1" % L)
    pair(s3, 32, s3+4, 36, "s_add_u32 s23, s21, %d" % (3*8192))
    A("s_branch %sfin" % L)
    A("%sy1:" % L)
    pair(32, s3+8, 36, s3+12, "s_add_u32 s23, s21, %d" % (3*8192 + 2*512))
    A("%sfin:" % L)
    if "ts" in EXP:
        A("s_memtime s[66:67]")
        A("s_waitcnt vmcnt(0)")
        A("s_memtime s[68:69]")
        A("s_memrealtime s[82:83]")
        A("s_waitcnt lgkmcnt(0)")
        A("s_sub_u32 s66, s82, s80\ns_add_u32 s66, s66, s60")
        A("s_sub_u32 s62, s62, s60\ns_sub_u32 s64, s64, s60\ns_sub_u32 s66, s66, s60\ns_sub_u32 s68, s68, s60")
        A("s_mov_b32 s72, s70\ns_mov_b32 s73, s71\ns_mov_b32 s74, 256\ns_mov_b32 s75, 0x00020000")
        if "ts2" in EXP: A("s_sub_u32 s62, s84, s60\ns_sub_u32 s64, s86, s60\ns_sub_u32 s66, s88, s60\ns_sub_u32 s68, s90, s60")
        A("v_mov_b32 v40, s62\nv_mov_b32 v41, s64\nv_mov_b32 v42, s66\nv_mov_b32 v43, s68")
        A("s_lshr_b32 s21, s2, 7\ns_lshl_b32 s21, s21, 3\ns_add_u32 s21, s21, s18\ns_lshl_b32 s21, s21, 4\nv_mov_b32 v44, s21")
        A("s_and_b32 s22, s2, 127\ns_cmp_eq_u32 s22, 5\ns_cbranch_scc0 %send" % L)
        A("v_cmp_eq_u32 vcc, 0, v2\ns_and_saveexec_b64 s[76:77], vcc")
        A("buffer_store_dwordx4 v[40:43], v44, s[72:75], 0 offen")
    A("%send:" % L)
    A("s_endpgm")
    return name
```

```python
from asmlib import *
import os
EXP = os.environ.get("EXP", "")
GRID = 256
BLOCK = 320
KPF = int(os.environ.get("KPF", "2"))
STR = 272
LDS = 64*STR
VGPR = 168
LOG2E_NEG = "0xbfb8aa3b"

def pk(A, op, d, a, b):
    A("v_pk_%s_f32 %s, %s, %s" % (op, vr(d, 2), vr(a, 2), vr(b, 2)))

def gen_kvt(A, name="kvt_kernel"):
    kernel_head(A, name)
    L = "Lkv_"
    A("s_cmp_ge_u32 s2, %d" % GRID)
    A("s_cbranch_scc1 %send" % L)
    ts_begin(A)
    A("v_lshrrev_b32 v1, 6, v0")
    A("s_load_dwordx2 s[34:35], s[0:1], 112")
    A("v_readfirstlane_b32 s18, v1")
    A("s_nop 3")
    A("s_cmp_eq_u32 s18, 4")
    A("s_cbranch_scc1 %spf" % L)
    A("s_load_dwordx4 s[24:27], s[0:1], 8")
    A("s_load_dwordx2 s[28:29], s[0:1], 24")
    A("s_and_b32 s16, s2, 15")
    A("s_lshr_b32 s17, s2, 4")
    A("v_lshrrev_b32 v1, 3, v0")
    A("v_and_b32 v2, 7, v0")
    A("s_lshl_b32 s18, s17, 18\ns_lshl_b32 s19, s16, 7\ns_add_u32 s18, s18, s19")
    A("v_lshlrev_b32 v3, 13, v1\nv_lshl_add_u32 v3, v2, 4, v3\nv_add_u32 v3, s18, v3")
    A("v_subrev_u32 v4, 6144, v3\nv_subrev_u32 v5, 4096, v3\nv_subrev_u32 v6, 2048, v3")
    A("v_lshlrev_b32 v7, 6, v2\ns_lshl_b32 s19, s16, 9\nv_add_u32 v7, s19, v7")
    A("s_waitcnt lgkmcnt(0)")
    make_srd(A, 4, 24, 25, 0, 2048*1024*2)
    make_srd(A, 8, 26, 27, 0, 2048*1024*2)
    make_srd(A, 12, 28, 29, 0, 1024*8)
    make_srd(A, 20, 34, 35, WS_URT, 1024*2048*2)
    TW, KR, VR = 16, 32, 60
    for q in range(4):
        A("buffer_load_dwordx4 %s, v7, s[12:15], 0 offen offset:%d" % (vr(TW+4*q), 16*q))
    for i in range(3):
        A("buffer_load_dwordx4 %s, v%d, s[4:7], 0 offen" % (vr(KR+4*i), 4+i))
    for i in range(4):
        A("s_movk_i32 s19, %d" % (i*2048))
        A("buffer_load_dwordx4 %s, v3, s[4:7], s19 offen" % vr(KR+12+4*i))
        A("buffer_load_dwordx4 %s, v3, s[8:11], s19 offen" % vr(VR+4*i))
    TF = 80
    KF = 112
    A("s_waitcnt vmcnt(11)")
    for c in range(8):
        A("v_lshlrev_b32 v%d, 16, v%d\nv_and_b32 v%d, 0xffff0000, v%d" % (TF+c, TW+2*c, TF+8+c, TW+2*c))
        A("v_lshlrev_b32 v%d, 16, v%d\nv_and_b32 v%d, 0xffff0000, v%d" % (TF+16+c, TW+2*c+1, TF+24+c, TW+2*c+1))
    def unpk(i):
        for q in range(4):
            unpack2(A, KF+8*i+2*q, KF+8*i+2*q+1, KR+4*i+q)
    RES = 16
    for j in range(4):
        A("s_waitcnt vmcnt(%d)" % (6 - 2*j))
        if j == 0:
            for i in range(4): unpk(i)
        else:
            unpk(j+3)
    A("s_barrier")
    ts(A, 0)
    for j in range(4):
        for cp in range(4):
            c0 = 2*cp
            a = RES + 8*j + c0
            t = 8 + 4*(cp & 1)
            pk(A, "mul", a, TF+24+c0, KF+8*j+c0)
            rnd2(A, a, a+1, t)
            for tap in range(1, 4):
                pk(A, "mul", t+2, TF+8*(3-tap)+c0, KF+8*(j+tap)+c0)
                rnd2(A, t+2, t+3, t)
                pk(A, "add", a, a, t+2)
                rnd2(A, a, a+1, t)
            unpack2(A, t+2, t+3, VR+4*j+cp)
            pk(A, "mul", a, a, t+2)
    A("v_mul_u32_u24 v8, %d, v2\nv_lshlrev_b32 v9, 3, v1\nv_sub_u32 v8, v8, v9\nv_add_u32 v8, 248, v8" % (8*STR))
    for c in range(8):
        A("v_cvt_pk_bf16_f32 v%d, v%d, v%d" % (48+2*c, RES+24+c, RES+16+c))
        A("v_cvt_pk_bf16_f32 v%d, v%d, v%d" % (49+2*c, RES+8+c, RES+c))
        A("ds_write_b64 v8, %s offset:%d" % (vr(48+2*c, 2), c*STR))
    A("s_waitcnt lgkmcnt(0)")
    A("s_barrier")
    ts(A, 1)
    A("v_lshrrev_b32 v8, 4, v0\nv_and_b32 v9, 15, v0")
    A("v_mul_u32_u24 v10, %d, v8\nv_lshl_add_u32 v10, v9, 4, v10" % STR)
    for it in range(4):
        A("ds_read_b128 %s, v10 offset:%d" % (vr(16+4*it), it*16*STR))
    A("v_lshlrev_b32 v11, 12, v8\nv_lshl_add_u32 v11, v9, 4, v11")
    A("s_lshl_b32 s18, s16, 18\ns_lshl_b32 s19, s17, 8\ns_sub_u32 s18, s18, s19\ns_add_u32 s18, s18, 3840")
    for it in range(4):
        A("s_waitcnt lgkmcnt(%d)" % (3-it))
        A("s_add_u32 s19, s18, %d" % (it*16*4096))
        A("buffer_store_dwordx4 %s, v11, s[20:23], s19 offen" % vr(16+4*it))
    ts_dump(A, 2, L+"end")
    A("s_endpgm")
    A("%spf:" % L)
    A("s_load_dwordx2 s[24:25], s[0:1], 32")
    A("s_load_dwordx4 s[44:47], s[0:1], 56")
    A("v_and_b32 v2, 63, v0\nv_lshlrev_b32 v3, 7, v2\ns_lshl_b32 s19, s2, 14")
    A("v_mul_u32_u24 v10, 9363, v2\nv_lshrrev_b32 v10, 16, v10")
    A("v_mul_u32_u24 v11, 7, v10\nv_sub_u32 v11, v2, v11")
    A("s_movk_i32 s20, 7168\nv_mul_lo_u32 v10, v10, s20\nv_lshl_add_u32 v10, v11, 7, v10")
    A("v_cmp_gt_u32 vcc, 56, v2\nv_mov_b32 v11, 0x80000000\ns_nop 1\nv_cndmask_b32 v10, v11, v10, vcc")
    A("s_and_b32 s43, s2, 7\ns_mul_i32 s43, s43, 896\ns_lshr_b32 s42, s2, 3\ns_mul_i32 s42, s42, %d\ns_add_u32 s43, s43, s42\ns_add_u32 s43, s43, %d" % (8*7168, 512*7168))
    A("s_waitcnt lgkmcnt(0)")
    make_srd(A, 4, 24, 25, 0, 1024*2048*2)
    make_srd(A, 48, 44, 45, 0, 1024*3584*2)
    make_srd(A, 52, 46, 47, 0, 1024*3584*2)
    make_srd(A, 36, 34, 35, WS_FLAG, 128*128)
    make_srd(A, 56, 34, 35, WS_FLAG + 0x8000, 8*128)
    A("v_mov_b32 v6, 0\nv_mov_b32 v7, 0\ns_lshl_b32 s21, s2, 7\ns_lshl_b32 s22, s2, 2")
    A("v_cmp_eq_u32 vcc, 0, v2\ns_and_saveexec_b64 s[40:41], vcc")
    A("buffer_store_dword v6, v7, s[36:39], s21 offen")
    A("buffer_store_dword v6, v7, s[56:59], s22 offen")
    A("s_mov_b64 exec, s[40:41]")
    A("s_barrier")
    A("buffer_load_dword v4, v3, s[4:7], s19 offen")
    A("s_add_u32 s19, s19, 8192")
    A("buffer_load_dword v5, v3, s[4:7], s19 offen")
    for it in range(KPF):
        A("buffer_load_dword v%d, v10, s[48:51], s43 offen" % (20+2*it))
        A("buffer_load_dword v%d, v10, s[52:55], s43 offen" % (21+2*it))
        A("s_add_u32 s43, s43, %d" % (256*7168))
    A("s_barrier")
    A("%send:" % L)
    A("s_endpgm")
    return name
```

```python
from asmlib import *
import os
EXP = os.environ.get("EXP", "")
LOG2E_NEG = "0xbfb8aa3b"
LDS = 163840
PD = int(os.environ.get("PD", "4"))
VGPR = 240

def emit_swiglu(A, g, u, out, t):
    rnd2(A, g, g+1, t); rnd2(A, g+2, g+3, t+1)
    rnd2(A, u, u+1, t+2); rnd2(A, u+2, u+3, t+3)
    A("v_pk_mul_f32 %s, %s, s[40:41]" % (vr(t, 2), vr(g, 2)))
    A("v_pk_mul_f32 %s, %s, s[40:41]" % (vr(t+2, 2), vr(g+2, 2)))
    for i in range(4):
        A("v_exp_f32 v%d, v%d" % (t+i, t+i))
    A("s_nop 0")
    A("v_pk_add_f32 %s, %s, s[42:43]" % (vr(t, 2), vr(t, 2)))
    A("v_pk_add_f32 %s, %s, s[42:43]" % (vr(t+2, 2), vr(t+2, 2)))
    for i in range(4):
        A("v_rcp_f32 v%d, v%d" % (t+i, t+i))
    A("s_nop 0")
    A("v_pk_mul_f32 %s, %s, %s" % (vr(g, 2), vr(g, 2), vr(t, 2)))
    A("v_pk_mul_f32 %s, %s, %s" % (vr(g+2, 2), vr(g+2, 2), vr(t+2, 2)))
    rnd2(A, g, g+1, t); rnd2(A, g+2, g+3, t+1)
    A("v_pk_mul_f32 %s, %s, %s" % (vr(g, 2), vr(g, 2), vr(u, 2)))
    A("v_pk_mul_f32 %s, %s, %s" % (vr(g+2, 2), vr(g+2, 2), vr(u+2, 2)))
    A("v_cvt_pk_bf16_f32 v%d, v%d, v%d" % (out, g, g+1))
    A("v_cvt_pk_bf16_f32 v%d, v%d, v%d" % (out+1, g+2, g+3))

def gen_gemm1(A, name="gemm1_kernel"):
    kernel_head(A, name)
    L = "Lg1_"
    A("s_cmp_ge_u32 s2, 256")
    A("s_cbranch_scc1 %send" % L)
    if "ts" in EXP: A("s_memtime s[60:61]\ns_memrealtime s[80:81]\ns_load_dwordx2 s[70:71], s[0:1], 104")
    A("s_load_dwordx4 s[24:27], s[0:1], 56")
    A("s_load_dwordx2 s[28:29], s[0:1], 112")
    A("s_load_dwordx2 s[44:45], s[0:1], 72")
    A("v_lshrrev_b32 v1, 6, v0")
    A("v_and_b32 v2, 63, v0")
    A("v_readfirstlane_b32 s18, v1")
    A("s_and_b32 s16, s2, 7\ns_lshl_b32 s16, s16, 2\ns_lshr_b32 s17, s2, 3\ns_and_b32 s17, s17, 3\ns_add_u32 s16, s16, s17")
    A("s_lshr_b32 s17, s2, 5")
    A("s_and_b32 s19, s18, 3")
    A("s_lshr_b32 s20, s18, 2")
    A("v_lshrrev_b32 v20, 4, v2")
    A("v_and_b32 v21, 15, v2")
    A("v_lshrrev_b32 v22, 3, v2")
    A("v_and_b32 v23, 7, v2")
    A("v_xor_b32 v24, v23, v20\nv_lshlrev_b32 v24, 4, v24\nv_lshl_add_u32 v4, v22, 11, v24")
    A("v_xor_b32 v5, 64, v4")
    A("v_lshrrev_b32 v24, 1, v21\nv_and_b32 v25, 1, v21")
    A("s_movk_i32 s21, 7168")
    A("v_mul_lo_u32 v26, v20, s21")
    A("v_lshl_add_u32 v26, v25, 4, v26")
    A("v_mov_b32 v28, 0x80000000")
    for (dst, fx) in ((6, 0), (7, 4)):
        A("v_xor_b32 v27, v24, v20")
        if fx: A("v_xor_b32 v27, %d, v27" % fx)
        A("v_cmp_ne_u32 vcc, 7, v27")
        A("v_lshl_add_u32 v27, v27, 5, v26")
        A("s_nop 1")
        A("v_cndmask_b32 v%d, v28, v27, vcc" % dst)
    A("s_lshl_b32 s30, s17, 19\ns_lshl_b32 s21, s18, 16\ns_add_u32 s30, s30, s21")
    A("s_mul_i32 s31, s16, 224\ns_mul_i32 s21, s19, %d\ns_add_u32 s31, s31, s21" % (16*7168))
    A("s_lshl_b32 s33, s18, 12")
    A("s_add_u32 s32, s33, 65536")
    A("s_add_u32 s36, s33, %d" % (65536 + 98304))
    A("s_waitcnt lgkmcnt(0)")
    if "ts2" in EXP: A("s_memtime s[84:85]")
    make_srd(A, 4, 28, 29, WS_H2, 2048*1024*2)
    A("s_cmp_eq_u32 s20, 0")
    A("s_cselect_b32 s8, s24, s26")
    A("s_cselect_b32 s9, s25, s27")
    A("s_mov_b32 s10, %d" % (1024*3584*2))
    A("s_mov_b32 s11, 0x00020000")

    def dmaA_ops():
        ops = []
        for ii in range(4):
            ops.append(["s_add_u32 m0, s32, %d" % (ii*1024),
                        "s_add_u32 s34, s30, %d" % (ii*8*2048),
                        "buffer_load_dwordx4 v%d, s[4:7], s34 offen lds" % (4 + (ii & 1))])
        ops[-1] = ops[-1] + ["s_add_u32 s30, s30, 128", "s_add_u32 s32, s32, 32768", "s_cmp_ge_u32 s32, s36",
                             "s_cselect_b32 s37, 98304, 0", "s_sub_u32 s32, s32, s37"]
        return ops
    def dmaB_ops(buf):
        ops = []
        for jj in range(4):
            ops.append(["s_add_u32 m0, s33, %d" % (buf*32768 + jj*1024),
                        "s_add_u32 s34, s31, %d" % (jj*4*7168),
                        "buffer_load_dwordx4 v%d, s[8:11], s34 offen lds" % (6 + (jj >> 1))])
        ops[-1] = ops[-1] + ["s_add_u32 s31, s31, %d" % (64*7168)]
        return ops
    def emit(groups):
        for g in groups:
            for x in g: A(x)
    FASTP = os.environ.get("FASTP", "1") == "1"
    emit(dmaB_ops(0)); emit(dmaA_ops())
    if not FASTP:
        A("s_barrier")
        emit(dmaB_ops(1)); emit(dmaA_ops())

    if "ts2" in EXP: A("s_memtime s[86:87]\ns_waitcnt vmcnt(19)\ns_memtime s[88:89]\ns_waitcnt vmcnt(16)\ns_memtime s[90:91]")
    make_srd(A, 12, 28, 29, WS_HH, 2048*3584*2)
    A("v_lshrrev_b32 v24, 1, v21\nv_xor_b32 v24, v24, v20\nv_lshlrev_b32 v24, 4, v24\nv_lshl_add_u32 v24, v21, 7, v24")
    A("s_lshl_b32 s21, s19, 13\ns_add_u32 s21, s21, 65536")
    A("v_add_u32 v18, s21, v24")
    A("v_xor_b32 v19, 64, v18")
    A("v_mov_b32 v8, v18\nv_mov_b32 v9, v19")
    A("s_mov_b32 s38, 0\ns_mov_b32 s39, 0")
    A("v_lshrrev_b32 v24, 2, v21\nv_and_b32 v25, 3, v21\nv_and_b32 v26, 1, v20\nv_lshl_or_b32 v26, v26, 2, v24")
    A("v_lshl_add_u32 v27, v20, 3, v24")
    A("v_lshlrev_b32 v27, 8, v27\nv_lshl_add_u32 v27, v25, 3, v27")
    A("s_lshl_b32 s21, s20, 2")
    for slot in range(7):
        if slot < 3:
            A("s_add_u32 s22, s21, %d\ns_mov_b32 s23, 0" % slot)
        elif slot == 3:
            A("s_mov_b32 s22, 3\ns_lshl_b32 s23, s20, 14")
        else:
            A("s_add_u32 s22, s21, %d\ns_mov_b32 s23, 16384" % (slot-4))
        A("v_xor_b32 v24, s22, v26")
        A("v_lshl_add_u32 v24, v24, 5, v27")
        A("v_add_u32 v%d, s23, v24" % (10+slot))
    A("s_mov_b32 s40, %s\ns_mov_b32 s41, %s\ns_mov_b32 s42, 1.0\ns_mov_b32 s43, 1.0" % (LOG2E_NEG, LOG2E_NEG))
    A("v_mul_u32_u24 v24, 21846, v2\nv_lshrrev_b32 v24, 16, v24")
    A("v_mul_u32_u24 v25, 3, v24\nv_sub_u32 v25, v2, v25")
    A("s_movk_i32 s21, 7168\nv_mul_lo_u32 v24, v24, s21\nv_lshl_add_u32 v24, v25, 7, v24")
    A("s_cmp_eq_u32 s19, 0\ns_cselect_b32 s21, 24, 0")
    A("v_cmp_gt_u32 vcc, s21, v2\nv_mov_b32 v25, 0x80000000\ns_nop 1\nv_cndmask_b32 v31, v25, v24, vcc")
    A("s_mul_i32 s46, s16, 224\ns_and_b32 s46, s46, 0xffffff80\ns_mul_i32 s21, s17, %d\ns_add_u32 s46, s46, s21\ns_add_u32 s46, s46, %d" % (8*7168, PD*64*7168))

    PT, PW, QT, QW, ACC = 32, 48, 76, 92, 128
    def read_ops(setT, setW, buf, kk):
        ops = []
        if "nords" in EXP: return ops
        for tb in range(4):
            ops.append("ds_read_b128 %s, v%d offset:%d" % (vr(setT+4*tb), 8+kk, tb*2048))
        sreg = 38 + kk
        ops[-1] = ops[-1] + "\ns_add_u32 s%d, s%d, 32768\ns_cmp_ge_u32 s%d, 98304\ns_cselect_b32 s%d, 0, s%d\nv_add_u32 v%d, s%d, v%d" % (sreg, sreg, sreg, sreg, sreg, 8+kk, sreg, 18+kk)
        for slot in range(7):
            for h in range(2):
                ops.append("ds_read_b64_tr_b16 %s, v%d offset:%d" % (vr(setW+4*slot+2*h, 2), 10+slot, buf*32768 + (32*kk+4*h)*256))
        return ops
    def mfma_ops(setT, setW):
        ops = []
        for slot in range(7):
            for tb in range(4):
                a = ACC + (slot*4+tb)*4
                ops.append("v_mfma_f32_16x16x32_bf16 %s, %s, %s, %s" % (vr(a), vr(setW+4*slot), vr(setT+4*tb), vr(a)))
        return ops
    def interleave(mf, fill):
        for i, m in enumerate(mf):
            if "nomfma" not in EXP: A(m)
            for x in fill.get(i, []):
                A(x)

    for i in range(112):
        A("v_mov_b32 v%d, 0" % (ACC+i))
    A("s_waitcnt vmcnt(%d)" % (0 if FASTP else 8))
    A("s_barrier")
    if "ts" in EXP: A("s_memtime s[62:63]")
    for x in read_ops(PT, PW, 0, 0): A(x)

    def stage(buf, dmaB, dmaA, do_next, vm, extraA=False, touch=False):
        A("s_waitcnt lgkmcnt(0)")
        rd = read_ops(QT, QW, buf, 1)
        fill = {}
        RPG = int(os.environ.get("RPG", "1"))
        for i, r in enumerate(rd):
            fill.setdefault(i // RPG, []).append(r)
        if extraA:
            ex = (dmaB_ops(1) + dmaA_ops() + dmaA_ops()) if FASTP else dmaA_ops()
            for i, g in enumerate(ex):
                fill.setdefault((2*i if FASTP else 10 + 2*i), []).extend(g)
        interleave(mfma_ops(PT, PW), fill)
        A("s_waitcnt vmcnt(%d) lgkmcnt(0)" % vm)
        A("s_barrier")
        fill = {}
        rd = read_ops(PT, PW, buf ^ 1, 0) if do_next else []
        dB = dmaB_ops(buf) if (dmaB and "nodma" not in EXP) else []
        dA = dmaA_ops() if (dmaA and "nodma" not in EXP) else []
        if RPG == 2:
            gap = 0
            for g in dB:
                fill.setdefault(gap, []).extend(g); gap += 1
            for i, r in enumerate(rd):
                fill.setdefault(gap + i // 2, []).append(r)
            gap += (len(rd) + 1) // 2
            for g in dA:
                fill.setdefault(gap, []).extend(g); gap += 2
        else:
            for i, r in enumerate(rd):
                fill.setdefault(i, []).append(r)
            for i, g in enumerate(dB + dA):
                fill.setdefault(1 + 3*i, []).extend(g)
            if touch:
                fill.setdefault(25, []).extend(["buffer_load_dword v30, v31, s[8:11], s46 offen", "s_add_u32 s46, s46, %d" % (64*7168)])
        interleave(mfma_ops(QT, QW), fill)

    TCH = PD > 0
    V5 = 5 if TCH else 4
    stage(0, True, True, True, 4, True, TCH)
    stage(1, True, True, True, V5, False, TCH)
    A("s_mov_b32 s35, 0")
    A("%sloop:" % L)
    stage(0, True, True, True, V5, False, TCH)
    stage(1, True, True, True, V5, False, TCH)
    A("s_add_u32 s35, s35, 1")
    A("s_cmp_lt_u32 s35, 5")
    A("s_cbranch_scc1 %sloop" % L)
    stage(0, True, True, True, V5)
    stage(1, True, False, True, 4)
    stage(0, False, False, True, 0)
    stage(1, False, False, False, 0)

    if "ts" in EXP: A("s_memtime s[64:65]")
    make_srd(A, 48, 44, 45, 0, 3584*1024*2)
    A("v_lshlrev_b32 v24, 7, v0\nv_cmp_gt_u32 vcc, 224, v0\nv_mov_b32 v25, 0x80000000\ns_mul_i32 s21, s2, 28672\nv_cndmask_b32 v24, v25, v24, vcc")
    A("buffer_load_dword v30, v24, s[48:51], s21 offen")
    A("s_nop 3")
    A("v_lshlrev_b32 v24, 4, v2")
    A("s_lshl_b32 s21, s18, 11")
    A("v_add_u32 v25, s21, v24")
    A("s_xor_b32 s21, s18, 4\ns_lshl_b32 s21, s21, 11")
    A("v_add_u32 v26, s21, v24")
    s3 = ACC + 12*4
    A("s_cmp_eq_u32 s20, 0")
    A("s_cbranch_scc0 %sx1" % L)
    A("ds_write_b128 v25, %s" % vr(s3+8))
    A("ds_write_b128 v25, %s offset:1024" % vr(s3+12))
    A("s_branch %sx2" % L)
    A("%sx1:" % L)
    A("ds_write_b128 v25, %s" % vr(s3))
    A("ds_write_b128 v25, %s offset:1024" % vr(s3+4))
    A("%sx2:" % L)
    A("s_waitcnt lgkmcnt(0)")
    A("s_barrier")
    A("ds_read_b128 v[32:35], v26")
    A("ds_read_b128 v[36:39], v26 offset:1024")
    A("v_and_b32 v24, 1, v20\nv_lshl_add_u32 v24, v24, 4, v21\nv_lshlrev_b32 v24, 5, v24")
    A("v_lshrrev_b32 v25, 1, v20\nv_lshl_add_u32 v27, v25, 4, v24")
    A("s_mul_i32 s21, s17, 224\ns_mul_i32 s22, s16, 7\ns_add_u32 s21, s21, s22\ns_lshl_b32 s21, s21, 13")
    A("s_lshl_b32 s22, s19, 11\ns_add_u32 s21, s21, s22")
    A("s_lshl_b32 s22, s20, 15\ns_add_u32 s22, s22, s21")
    T = 40
    O = 60
    cnt = 0
    def pair(g0, u0, g1, u1, soff_expr):
        nonlocal cnt
        o = O + 4*(cnt % 4); t = T + 8*(cnt % 2); cnt += 1
        emit_swiglu(A, g0, u0, o, t)
        emit_swiglu(A, g1, u1, o+2, t+4)
        A(soff_expr)
        A("s_nop 0")
        A("v_permlane16_swap_b32 v%d, v%d" % (o, o+2))
        A("v_permlane16_swap_b32 v%d, v%d" % (o+1, o+3))
        A("buffer_store_dwordx4 %s, v27, s[12:15], s23 offen" % vr(o))
    for j in range(3):
        for tp in range(2):
            tb = 2*tp
            g = ACC + (j*4+tb)*4
            u = ACC + ((j+4)*4+tb)*4
            pair(g, u, g+4, u+4, "s_add_u32 s23, s22, %d" % (j*8192 + tb*512))
    A("s_waitcnt lgkmcnt(0)")
    A("s_cmp_eq_u32 s20, 0")
    A("s_cbranch_scc0 %sy1" % L)
    pair(s3, 32, s3+4, 36, "s_add_u32 s23, s21, %d" % (3*8192))
    A("s_branch %sfin" % L)
    A("%sy1:" % L)
    pair(32, s3+8, 36, s3+12, "s_add_u32 s23, s21, %d" % (3*8192 + 2*512))
    A("%sfin:" % L)
    if "ts" in EXP:
        A("s_memtime s[66:67]")
        A("s_waitcnt vmcnt(0)")
        A("s_memtime s[68:69]")
        A("s_memrealtime s[82:83]")
        A("s_waitcnt lgkmcnt(0)")
        A("s_sub_u32 s66, s82, s80\ns_add_u32 s66, s66, s60")
        A("s_sub_u32 s62, s62, s60\ns_sub_u32 s64, s64, s60\ns_sub_u32 s66, s66, s60\ns_sub_u32 s68, s68, s60")
        A("s_mov_b32 s72, s70\ns_mov_b32 s73, s71\ns_mov_b32 s74, 256\ns_mov_b32 s75, 0x00020000")
        if "ts2" in EXP: A("s_sub_u32 s62, s84, s60\ns_sub_u32 s64, s86, s60\ns_sub_u32 s66, s88, s60\ns_sub_u32 s68, s90, s60")
        A("v_mov_b32 v40, s62\nv_mov_b32 v41, s64\nv_mov_b32 v42, s66\nv_mov_b32 v43, s68")
        A("s_lshr_b32 s21, s2, 7\ns_lshl_b32 s21, s21, 3\ns_add_u32 s21, s21, s18\ns_lshl_b32 s21, s21, 4\nv_mov_b32 v44, s21")
        A("s_and_b32 s22, s2, 127\ns_cmp_eq_u32 s22, 5\ns_cbranch_scc0 %send" % L)
        A("v_cmp_eq_u32 vcc, 0, v2\ns_and_saveexec_b64 s[76:77], vcc")
        A("buffer_store_dwordx4 v[40:43], v44, s[72:75], 0 offen")
    A("%send:" % L)
    A("s_endpgm")
    return name
```

```python
from asmlib import *
import os
EXP = os.environ.get("EXP", "")
GV = os.environ.get("GV", "conv")
GRID = 256 + (192 if GV == "kvt" else 0)
BLOCK = 320
KPF = int(os.environ.get("KPF", "2"))
STR = 272
LDS = 64*STR
VGPR = 168
LOG2E_NEG = "0xbfb8aa3b"

def pk(A, op, d, a, b):
    A("v_pk_%s_f32 %s, %s, %s" % (op, vr(d, 2), vr(a, 2), vr(b, 2)))

def gen_kvt(A, name="kvt_kernel"):
    kernel_head(A, name)
    L = "Lkv_"
    A("s_cmp_ge_u32 s2, %d" % GRID)
    A("s_cbranch_scc1 %send" % L)
    ts_begin(A)
    A("v_lshrrev_b32 v1, 6, v0")
    A("s_load_dwordx2 s[34:35], s[0:1], 112")
    A("v_readfirstlane_b32 s18, v1")
    A("s_nop 3")
    if GV == "kvt":
        A("s_cmp_ge_u32 s2, 256")
        A("s_cbranch_scc1 %sgemv" % L)
    A("s_cmp_eq_u32 s18, 4")
    A("s_cbranch_scc1 %spf" % L)
    A("s_load_dwordx4 s[24:27], s[0:1], 8")
    A("s_load_dwordx2 s[28:29], s[0:1], 24")
    A("s_and_b32 s16, s2, 15")
    A("s_lshr_b32 s17, s2, 4")
    A("v_lshrrev_b32 v1, 3, v0")
    A("v_and_b32 v2, 7, v0")
    A("s_lshl_b32 s18, s17, 18\ns_lshl_b32 s19, s16, 7\ns_add_u32 s18, s18, s19")
    A("v_lshlrev_b32 v3, 13, v1\nv_lshl_add_u32 v3, v2, 4, v3\nv_add_u32 v3, s18, v3")
    A("v_subrev_u32 v4, 6144, v3\nv_subrev_u32 v5, 4096, v3\nv_subrev_u32 v6, 2048, v3")
    A("v_lshlrev_b32 v7, 6, v2\ns_lshl_b32 s19, s16, 9\nv_add_u32 v7, s19, v7")
    A("s_waitcnt lgkmcnt(0)")
    make_srd(A, 4, 24, 25, 0, 2048*1024*2)
    make_srd(A, 8, 26, 27, 0, 2048*1024*2)
    make_srd(A, 12, 28, 29, 0, 1024*8)
    make_srd(A, 20, 34, 35, WS_URT, 1024*2048*2)
    TW, KR, VR = 16, 32, 60
    for q in range(4):
        A("buffer_load_dwordx4 %s, v7, s[12:15], 0 offen offset:%d" % (vr(TW+4*q), 16*q))
    for i in range(3):
        A("buffer_load_dwordx4 %s, v%d, s[4:7], 0 offen" % (vr(KR+4*i), 4+i))
    for i in range(4):
        A("s_movk_i32 s19, %d" % (i*2048))
        A("buffer_load_dwordx4 %s, v3, s[4:7], s19 offen" % vr(KR+12+4*i))
        A("buffer_load_dwordx4 %s, v3, s[8:11], s19 offen" % vr(VR+4*i))
    TF = 80
    KF = 112
    A("s_waitcnt vmcnt(11)")
    for c in range(8):
        A("v_lshlrev_b32 v%d, 16, v%d\nv_and_b32 v%d, 0xffff0000, v%d" % (TF+c, TW+2*c, TF+8+c, TW+2*c))
        A("v_lshlrev_b32 v%d, 16, v%d\nv_and_b32 v%d, 0xffff0000, v%d" % (TF+16+c, TW+2*c+1, TF+24+c, TW+2*c+1))
    def unpk(i):
        for q in range(4):
            unpack2(A, KF+8*i+2*q, KF+8*i+2*q+1, KR+4*i+q)
    RES = 16
    for j in range(4):
        A("s_waitcnt vmcnt(%d)" % (6 - 2*j))
        if j == 0:
            for i in range(4): unpk(i)
        else:
            unpk(j+3)
    A("s_barrier")
    ts(A, 0)
    for j in range(4):
        for cp in range(4):
            c0 = 2*cp
            a = RES + 8*j + c0
            t = 8 + 4*(cp & 1)
            pk(A, "mul", a, TF+24+c0, KF+8*j+c0)
            rnd2(A, a, a+1, t)
            for tap in range(1, 4):
                pk(A, "mul", t+2, TF+8*(3-tap)+c0, KF+8*(j+tap)+c0)
                rnd2(A, t+2, t+3, t)
                pk(A, "add", a, a, t+2)
                rnd2(A, a, a+1, t)
            unpack2(A, t+2, t+3, VR+4*j+cp)
            pk(A, "mul", a, a, t+2)
    A("v_mul_u32_u24 v8, %d, v2\nv_lshlrev_b32 v9, 3, v1\nv_sub_u32 v8, v8, v9\nv_add_u32 v8, 248, v8" % (8*STR))
    for c in range(8):
        A("v_cvt_pk_bf16_f32 v%d, v%d, v%d" % (48+2*c, RES+24+c, RES+16+c))
        A("v_cvt_pk_bf16_f32 v%d, v%d, v%d" % (49+2*c, RES+8+c, RES+c))
        A("ds_write_b64 v8, %s offset:%d" % (vr(48+2*c, 2), c*STR))
    A("s_waitcnt lgkmcnt(0)")
    A("s_barrier")
    ts(A, 1)
    A("v_lshrrev_b32 v8, 4, v0\nv_and_b32 v9, 15, v0")
    A("v_mul_u32_u24 v10, %d, v8\nv_lshl_add_u32 v10, v9, 4, v10" % STR)
    for it in range(4):
        A("ds_read_b128 %s, v10 offset:%d" % (vr(16+4*it), it*16*STR))
    A("v_lshlrev_b32 v11, 12, v8\nv_lshl_add_u32 v11, v9, 4, v11")
    A("s_lshl_b32 s18, s16, 18\ns_lshl_b32 s19, s17, 8\ns_sub_u32 s18, s18, s19\ns_add_u32 s18, s18, 3840")
    for it in range(4):
        A("s_waitcnt lgkmcnt(%d)" % (3-it))
        A("s_add_u32 s19, s18, %d" % (it*16*4096))
        A("buffer_store_dwordx4 %s, v11, s[20:23], s19 offen" % vr(16+4*it))
    ts_dump(A, 2, L+"end")
    A("s_endpgm")
    A("%spf:" % L)
    A("s_load_dwordx2 s[24:25], s[0:1], 32")
    A("s_load_dwordx4 s[44:47], s[0:1], 56")
    A("v_and_b32 v2, 63, v0\nv_lshlrev_b32 v3, 7, v2\ns_lshl_b32 s19, s2, 14")
    A("v_mul_u32_u24 v10, 9363, v2\nv_lshrrev_b32 v10, 16, v10")
    A("v_mul_u32_u24 v11, 7, v10\nv_sub_u32 v11, v2, v11")
    A("s_movk_i32 s20, 7168\nv_mul_lo_u32 v10, v10, s20\nv_lshl_add_u32 v10, v11, 7, v10")
    A("v_cmp_gt_u32 vcc, 56, v2\nv_mov_b32 v11, 0x80000000\ns_nop 1\nv_cndmask_b32 v10, v11, v10, vcc")
    A("s_and_b32 s43, s2, 7\ns_mul_i32 s43, s43, 896\ns_lshr_b32 s42, s2, 3\ns_mul_i32 s42, s42, %d\ns_add_u32 s43, s43, s42\ns_add_u32 s43, s43, %d" % (8*7168, 512*7168))
    A("s_waitcnt lgkmcnt(0)")
    make_srd(A, 4, 24, 25, 0, 1024*2048*2)
    make_srd(A, 48, 44, 45, 0, 1024*3584*2)
    make_srd(A, 52, 46, 47, 0, 1024*3584*2)
    make_srd(A, 36, 34, 35, WS_FLAG, 128*128)
    make_srd(A, 56, 34, 35, WS_FLAG + 0x8000, 8*128)
    A("v_mov_b32 v6, 0\nv_mov_b32 v7, 0\ns_lshl_b32 s21, s2, 7\ns_lshl_b32 s22, s2, 2")
    A("v_cmp_eq_u32 vcc, 0, v2\ns_and_saveexec_b64 s[40:41], vcc")
    A("buffer_store_dword v6, v7, s[36:39], s21 offen")
    A("buffer_store_dword v6, v7, s[56:59], s22 offen")
    A("s_mov_b64 exec, s[40:41]")
    A("s_barrier")
    A("buffer_load_dword v4, v3, s[4:7], s19 offen")
    A("s_add_u32 s19, s19, 8192")
    A("buffer_load_dword v5, v3, s[4:7], s19 offen")
    for it in range(KPF):
        A("buffer_load_dword v%d, v10, s[48:51], s43 offen" % (20+2*it))
        A("buffer_load_dword v%d, v10, s[52:55], s43 offen" % (21+2*it))
        A("s_add_u32 s43, s43, %d" % (256*7168))
    A("s_barrier")
    if GV == "kvt":
        A("s_endpgm")
        A("%sgemv:" % L)
        A("s_cmp_eq_u32 s18, 4")
        A("s_cbranch_scc1 %send" % L)
        RED0 = 0
        A("s_load_dwordx4 s[36:39], s[0:1], 80")
        A("s_sub_u32 s16, s2, 256")
        A("v_and_b32 v2, 63, v0")
        A("s_cmp_ge_u32 s16, 96\ns_cselect_b32 s41, 1, 0\ns_mul_i32 s42, s41, 96\ns_sub_u32 s42, s16, s42")
        A("v_lshrrev_b32 v9, 3, v0\ns_movk_i32 s19, 12288\nv_mul_lo_u32 v7, v9, s19")
        A("v_and_b32 v8, 7, v0\nv_lshl_add_u32 v7, v8, 4, v7")
        A("s_mul_i32 s43, s41, %d\ns_lshl_b32 s19, s42, 7\ns_add_u32 s43, s43, s19" % (512*12288))
        A("v_lshlrev_b32 v4, 1, v9\ns_lshl_b32 s19, s41, 10")
        A("s_waitcnt lgkmcnt(0)")
        make_srd(A, 20, 38, 39, 0, 1024*6144*2)
        make_srd(A, 52, 36, 37, 0, 2048)
        for i in range(16):
            A("buffer_load_ushort v%d, v4, s[52:55], s19 offen offset:%d" % (60+i, 64*i))
        WR = 96
        for i in range(16):
            A("s_add_u32 s50, s43, %d" % (i*32*12288))
            A("buffer_load_dwordx4 %s, v7, s[20:23], s50 offen" % vr(WR+4*i))
        A("s_waitcnt vmcnt(16)")
        for i in range(16): A("v_lshlrev_b32 v%d, 16, v%d" % (60+i, 60+i))
        for i in range(16): A("v_mul_f32 v%d, %s, v%d" % (32+i, LOG2E_NEG, 60+i))
        for i in range(16): A("v_exp_f32 v%d, v%d" % (32+i, 32+i))
        for i in range(16): A("v_add_f32 v%d, 1.0, v%d" % (32+i, 32+i))
        for i in range(16): A("v_rcp_f32 v%d, v%d" % (32+i, 32+i))
        for i in range(16): A("v_mul_f32 v%d, v%d, v%d" % (60+i, 60+i, 32+i))
        for i in range(0, 16, 2): rnd2(A, 60+i, 61+i, 32+i)
        for q in range(8): A("v_mov_b32 v%d, 0" % (80+q))
        for i in range(16):
            w = WR + 4*i
            A("s_waitcnt vmcnt(%d)" % (15-i))
            for q in range(4):
                A("v_lshlrev_b32 v12, 16, v%d\nv_and_b32 v13, 0xffff0000, v%d" % (w+q, w+q))
                A("v_fmac_f32 v%d, v%d, v12\nv_fmac_f32 v%d, v%d, v13" % (80+2*q, 60+i, 81+2*q, 60+i))
        A("s_nop 1")
        for q in range(8):
            A("v_add_f32_dpp v%d, v%d, v%d row_ror:8 row_mask:0xf bank_mask:0xf" % (80+q, 80+q, 80+q))
        A("v_lshrrev_b32 v10, 4, v0\nv_lshlrev_b32 v10, 8, v10\nv_and_b32 v11, 7, v0\nv_lshl_add_u32 v10, v11, 5, v10")
        A("v_and_b32 v11, 15, v0\nv_cmp_gt_u32 vcc, 8, v11\ns_and_saveexec_b64 s[58:59], vcc")
        A("ds_write_b128 v10, v[80:83] offset:%d\nds_write_b128 v10, v[84:87] offset:%d" % (RED0, RED0+16))
        A("s_mov_b64 exec, s[58:59]")
        A("s_waitcnt lgkmcnt(0)")
        A("s_barrier")
        A("s_cmp_eq_u32 s18, 0")
        A("s_cbranch_scc0 %send" % L)
        A("v_lshlrev_b32 v10, 2, v2")
        for i in range(16):
            A("ds_read_b32 v%d, v10 offset:%d" % (60+i, RED0 + i*256))
        A("s_waitcnt lgkmcnt(0)")
        for i in range(1, 16): A("v_add_f32 v60, v60, v%d" % (60+i))
        make_srd(A, 20, 34, 35, WS_MOD, 2*6144*4)
        A("s_mul_i32 s19, s41, 24576\ns_lshl_b32 s50, s42, 8\ns_add_u32 s19, s19, s50")
        A("buffer_store_dword v60, v10, s[20:23], s19 offen")
    A("%send:" % L)
    A("s_endpgm")
    return name
```

```python
from asmlib import *
import os
EXP = os.environ.get("EXP", "")
GRID = 256
BLOCK = 512
HSTR = 4160
HCH = 4*HSTR
UR0 = 0
URS = 4608
RED0 = UR0 + 4*URS
H0 = RED0 + 4096
LDS = H0 + 4*HCH
VGPR = 240
LOG2E_NEG = "0xbfb8aa3b"
YS = H0
YSTR = 4096 + 16
STR = 272
WS_KFLAG = WS_FLAG + 0xC000

def pk(A, op, d, a, b):
    A("v_pk_%s_f32 %s, %s, %s" % (op, vr(d, 2), vr(a, 2), vr(b, 2)))

def gen_front(A, name="front_kernel"):
    kernel_head(A, name)
    L = "Lfr_"
    A("s_cmp_ge_u32 s2, 256")
    A("s_cbranch_scc1 %send" % L)
    ts_begin(A)
    A("s_load_dwordx4 s[24:27], s[0:1], 8")
    A("s_load_dwordx4 s[28:31], s[0:1], 24")
    A("s_load_dwordx2 s[32:33], s[0:1], 40")
    A("s_load_dwordx4 s[60:63], s[0:1], 104")
    A("v_lshrrev_b32 v1, 6, v0")
    A("v_and_b32 v2, 63, v0")
    A("v_readfirstlane_b32 s18, v1")
    A("s_nop 3")
    A("s_cmp_ge_u32 s18, 4")
    A("s_cbranch_scc1 %shelp" % L)
    A("s_and_b32 s40, s2, 15")
    A("s_lshr_b32 s41, s2, 4")
    A("v_lshrrev_b32 v1, 3, v0")
    A("v_and_b32 v9, 7, v0")
    A("s_lshl_b32 s19, s41, 18\ns_lshl_b32 s20, s40, 7\ns_add_u32 s19, s19, s20")
    A("v_lshlrev_b32 v3, 13, v1\nv_lshl_add_u32 v3, v9, 4, v3\nv_add_u32 v3, s19, v3")
    A("v_subrev_u32 v4, 6144, v3\nv_subrev_u32 v5, 4096, v3\nv_subrev_u32 v6, 2048, v3")
    A("v_lshlrev_b32 v7, 6, v9\ns_lshl_b32 s20, s40, 9\nv_add_u32 v7, s20, v7")
    A("s_and_b32 s16, s2, 7\ns_lshl_b32 s16, s16, 5\ns_lshr_b32 s17, s2, 3\ns_add_u32 s16, s16, s17")
    A("s_lshl_b32 s17, s16, 2\ns_add_u32 s17, s17, s18")
    A("v_lshlrev_b32 v232, 4, v2\nv_subrev_u32 v233, 32, v232\nv_subrev_u32 v234, 16, v232\nv_add_u32 v235, %d, v232" % (62*16))
    A("s_waitcnt lgkmcnt(0)")
    make_srd(A, 4, 24, 25, 0, 2048*1024*2)
    make_srd(A, 8, 26, 27, 0, 2048*1024*2)
    make_srd(A, 12, 28, 29, 0, 1024*8)
    make_srd(A, 20, 62, 63, WS_URT, 1024*2048*2)
    A("s_lshl_b32 s19, s16, 3\ns_add_u32 s32, s32, s19\ns_addc_u32 s33, s33, 0")
    A("s_load_dwordx2 s[48:49], s[32:33], 0")
    A("s_lshl_b32 s42, s17, 12\ns_add_u32 s36, s30, s42\ns_addc_u32 s37, s31, 0\ns_movk_i32 s38, 4096\ns_mov_b32 s39, 0x00020000")
    make_srd(A, 64, 60, 61, 0, 256)
    make_srd(A, 68, 62, 63, WS_KFLAG, 16*128)
    A("s_or_b32 s19, s2, s18")
    A("s_cmp_eq_u32 s19, 0")
    A("s_cbranch_scc0 %snononce" % L)
    A("s_memrealtime s[44:45]")
    A("s_waitcnt lgkmcnt(0)")
    A("s_or_b32 s44, s44, 1")
    A("v_mov_b32 v10, s44\nv_mov_b32 v11, s45\nv_mov_b32 v12, 0")
    A("v_cmp_eq_u32 vcc, 0, v2\ns_and_saveexec_b64 s[58:59], vcc")
    A("buffer_store_dwordx2 v[10:11], v12, s[64:67], 0 offen sc0 sc1")
    A("s_mov_b64 exec, s[58:59]")
    A("s_waitcnt vmcnt(0)")
    A("%snononce:" % L)
    TW, KR, VR = 16, 32, 60
    for q in range(4):
        A("buffer_load_dwordx4 %s, v7, s[12:15], 0 offen offset:%d" % (vr(TW+4*q), 16*q))
    for i in range(3):
        A("buffer_load_dwordx4 %s, v%d, s[4:7], 0 offen" % (vr(KR+4*i), 4+i))
    for i in range(4):
        A("s_movk_i32 s19, %d" % (i*2048))
        A("buffer_load_dwordx4 %s, v3, s[4:7], s19 offen" % vr(KR+12+4*i))
        A("buffer_load_dwordx4 %s, v3, s[8:11], s19 offen" % vr(VR+4*i))
    HS = 192
    for it in range(5):
        if it == 0:
            A("buffer_load_dwordx4 %s, v233, s[36:39], 0 offen" % vr(HS))
            A("buffer_load_dwordx2 %s, v234, s[36:39], 0 offen" % vr(HS+4, 2))
        else:
            A("buffer_load_dwordx4 %s, v235, s[36:39], 0 offen offset:%d" % (vr(HS+8*it), (it-1)*1024))
            A("buffer_load_dwordx2 %s, v235, s[36:39], 0 offen offset:%d" % (vr(HS+8*it+4, 2), (it-1)*1024+16))
    TF = 80; KF = 112
    A("s_waitcnt vmcnt(21)")
    for c in range(8):
        A("v_lshlrev_b32 v%d, 16, v%d\nv_and_b32 v%d, 0xffff0000, v%d" % (TF+c, TW+2*c, TF+8+c, TW+2*c))
        A("v_lshlrev_b32 v%d, 16, v%d\nv_and_b32 v%d, 0xffff0000, v%d" % (TF+16+c, TW+2*c+1, TF+24+c, TW+2*c+1))
    def unpk(i):
        for q in range(4):
            unpack2(A, KF+8*i+2*q, KF+8*i+2*q+1, KR+4*i+q)
    RES = 16
    for j in range(4):
        A("s_waitcnt vmcnt(%d)" % (16 - 2*j))
        if j == 0:
            for i in range(4): unpk(i)
        else:
            unpk(j+3)
    A("s_barrier")
    ts(A, 0)
    for j in range(4):
        for cp in range(4):
            c0 = 2*cp
            a = RES + 8*j + c0
            t = 168 + 4*(cp & 1)
            pk(A, "mul", a, TF+24+c0, KF+8*j+c0)
            rnd2(A, a, a+1, t)
            for tap in range(1, 4):
                pk(A, "mul", t+2, TF+8*(3-tap)+c0, KF+8*(j+tap)+c0)
                rnd2(A, t+2, t+3, t)
                pk(A, "add", a, a, t+2)
                rnd2(A, a, a+1, t)
            unpack2(A, t+2, t+3, VR+4*j+cp)
            pk(A, "mul", a, a, t+2)
    A("v_mul_u32_u24 v8, %d, v9\nv_lshlrev_b32 v10, 3, v1\nv_sub_u32 v8, v8, v10\nv_add_u32 v8, 248, v8" % (8*STR))
    for c in range(8):
        A("v_cvt_pk_bf16_f32 v%d, v%d, v%d" % (48+2*c, RES+24+c, RES+16+c))
        A("v_cvt_pk_bf16_f32 v%d, v%d, v%d" % (49+2*c, RES+8+c, RES+c))
        A("ds_write_b64 v8, %s offset:%d" % (vr(48+2*c, 2), c*STR))
    A("s_waitcnt lgkmcnt(0)")
    A("s_barrier")
    A("v_lshrrev_b32 v8, 4, v0\nv_and_b32 v9, 15, v0")
    A("v_mul_u32_u24 v10, %d, v8\nv_lshl_add_u32 v10, v9, 4, v10" % STR)
    for it in range(4):
        A("ds_read_b128 %s, v10 offset:%d" % (vr(16+4*it), it*16*STR))
    A("v_lshlrev_b32 v11, 12, v8\nv_lshl_add_u32 v11, v9, 4, v11")
    A("s_lshl_b32 s19, s40, 18\ns_lshl_b32 s43, s41, 8\ns_sub_u32 s19, s19, s43\ns_add_u32 s19, s19, 3840")
    for it in range(4):
        A("s_waitcnt lgkmcnt(%d)" % (3-it))
        A("s_add_u32 s43, s19, %d" % (it*16*4096))
        A("buffer_store_dwordx4 %s, v11, s[20:23], s43 offen sc0 sc1" % vr(16+4*it))
    A("v_mov_b32 v12, 0")
    A("buffer_load_dwordx2 v[14:15], v12, s[64:67], 0 offen sc0 sc1")
    ts(A, 1)
    A("s_cmp_lt_u32 s18, 2\ns_cselect_b32 s51, s48, s49\ns_lshl_b32 s57, s51, 16\ns_and_b32 s51, s51, 0xffff0000\ns_bitcmp1_b32 s18, 0\ns_cselect_b32 s51, s51, s57")
    A("s_mul_i32 s19, s18, %d\ns_add_u32 s19, s19, %d" % (HCH, H0))
    A("v_add_u32 v9, s19, v232")
    A("s_waitcnt vmcnt(5)")
    for it in range(5):
        d = HS + 8*it
        if it == 4:
            A("v_cmp_gt_u32 vcc, 4, v2\ns_and_saveexec_b64 s[58:59], vcc")
        off = it*1024
        A("ds_write_b128 v9, %s offset:%d" % (vr(d), off))
        for q in range(4): A("v_alignbit_b32 v%d, v%d, v%d, 16" % (32+q, d+q+1, d+q))
        A("ds_write_b128 v9, v[32:35] offset:%d" % (off + HSTR))
        for q in range(4): A("v_mov_b32 v%d, v%d" % (36+q, d+q+1))
        A("ds_write_b128 v9, v[36:39] offset:%d" % (off + 2*HSTR))
        for q in range(4): A("v_alignbit_b32 v%d, v%d, v%d, 16" % (40+q, d+q+2, d+q+1))
        A("ds_write_b128 v9, v[40:43] offset:%d" % (off + 3*HSTR))
        if it == 4:
            A("s_mov_b64 exec, s[58:59]")
    A("s_waitcnt vmcnt(0) lgkmcnt(0)")
    A("s_barrier")
    A("s_cmp_eq_u32 s18, 0")
    A("s_cbranch_scc0 %sw3" % L)
    A("%snp:" % L)
    A("v_readfirstlane_b32 s44, v14")
    A("v_readfirstlane_b32 s45, v15")
    A("s_cmp_lg_u32 s44, 0")
    A("s_cbranch_scc1 %snok" % L)
    A("buffer_load_dwordx2 v[14:15], v12, s[64:67], 0 offen sc0 sc1")
    A("s_waitcnt vmcnt(0)")
    A("s_branch %snp" % L)
    A("%snok:" % L)
    A("s_lshl_b32 s19, s40, 7\ns_lshl_b32 s43, s41, 3\ns_add_u32 s19, s19, s43")
    A("v_cmp_eq_u32 vcc, 0, v2\ns_and_saveexec_b64 s[58:59], vcc")
    A("buffer_store_dwordx2 v[14:15], v12, s[68:71], s19 offen sc0 sc1")
    A("s_mov_b64 exec, s[58:59]")
    A("s_lshr_b32 s19, s16, 4\ns_lshl_b32 s19, s19, 7")
    A("v_and_b32 v13, 15, v2\nv_lshlrev_b32 v13, 3, v13")
    A("%sgp:" % L)
    A("buffer_load_dwordx2 v[16:17], v13, s[68:71], s19 offen sc0 sc1")
    A("s_waitcnt vmcnt(0)")
    A("v_cmp_ne_u32 vcc, s44, v16")
    A("v_cmp_ne_u32 s[46:47], s45, v17")
    A("s_or_b64 vcc, vcc, s[46:47]")
    A("s_cmp_eq_u64 vcc, 0")
    A("s_cbranch_scc0 %sgp" % L)
    A("%sw3:" % L)
    A("s_barrier")
    ts(A, 2)
    for i in range(4):
        A("s_add_u32 s43, s42, %d" % (i*1024))
        A("buffer_load_dwordx4 %s, v232, s[20:23], s43 offen sc0 sc1" % vr(32+4*i))
    A("v_mov_b32 v12, 0\nv_mov_b32 v13, 0\nv_mov_b32 v14, 0\nv_mov_b32 v15, 0")
    A("s_mul_i32 s19, s18, %d" % URS)
    A("v_add_u32 v11, s19, v232")
    A("v_cmp_gt_u32 vcc, 32, v2\ns_and_saveexec_b64 s[58:59], vcc")
    A("ds_write_b128 v11, v[12:15] offset:%d" % (UR0 + 4096))
    A("s_mov_b64 exec, s[58:59]")
    A("v_and_b32 v10, 15, v2\nv_lshrrev_b32 v1, 4, v2")
    A("v_add_u32 v12, 1, v10\nv_and_b32 v13, 3, v12\nv_lshrrev_b32 v12, 2, v12")
    A("v_mul_u32_u24 v13, %d, v13\nv_lshl_add_u32 v13, v12, 3, v13\nv_lshl_add_u32 v13, v1, 4, v13" % HSTR)
    A("s_mul_i32 s19, s18, %d\ns_add_u32 s19, s19, %d" % (HCH, H0))
    A("v_add_u32 v3, s19, v13")
    A("v_lshlrev_b32 v12, 5, v10\nv_lshlrev_b32 v13, 4, v1\nv_sub_u32 v12, v13, v12")
    A("s_mul_i32 s19, s18, %d\ns_add_u32 s19, s19, %d" % (URS, UR0 + 4064 - 512*7))
    A("v_add_u32 v4, s19, v12")
    ACC = 160
    for i in range(32): A("v_mov_b32 v%d, 0" % (ACC+i))
    for i in range(4):
        A("s_waitcnt vmcnt(%d)" % (3-i))
        A("ds_write_b128 v11, %s offset:%d" % (vr(32+4*i), UR0 + i*1024))
    FA = [32, 96]; FB = [64, 128]
    def rd(r, s):
        ops = []
        for p in range(8):
            ops.append("ds_read_b64 %s, v3 offset:%d" % (vr(FA[s]+4*p, 2), 512*p + 64*r))
            ops.append("ds_read_b64 %s, v3 offset:%d" % (vr(FA[s]+4*p+2, 2), 512*p + 64*r + 8))
            ops.append("ds_read_b128 %s, v4 offset:%d" % (vr(FB[s]+4*p), 512*(7-p) + 64*r))
        return ops
    A("s_waitcnt lgkmcnt(0)")
    ts(A, 3)
    for x in rd(0, 0): A(x)
    for r in range(8):
        s = r & 1
        A("s_waitcnt lgkmcnt(0)")
        nxt = rd(r+1, s ^ 1) if r < 7 else []
        k = 0
        for t in range(8):
            for p in range(t+1):
                q = t - p
                A("v_mfma_f32_16x16x32_bf16 %s, %s, %s, %s" % (vr(ACC+4*t), vr(FA[s]+4*p), vr(FB[s]+4*q), vr(ACC+4*t)))
                if k < len(nxt): A(nxt[k]); k += 1
    ts(A, 4)
    A("v_lshlrev_b32 v12, 5, v10\nv_lshl_add_u32 v12, v1, 3, v12")
    A("s_mul_i32 s19, s18, %d\ns_add_u32 s19, s19, %d" % (URS, UR0 + 4088 - 512*7))
    A("v_sub_u32 v13, s19, v12")
    for t in range(8):
        A("ds_read_b64 %s, v13 offset:%d" % (vr(32+2*t, 2), 512*(7-t)))
    A("s_barrier")
    A("s_mul_i32 s19, s18, %d\ns_add_u32 s19, s19, %d" % (YSTR, YS))
    A("v_add_u32 v14, s19, v12")
    A("s_waitcnt lgkmcnt(0)")
    for t in range(8):
        a = ACC + 4*t
        u = 32 + 2*t
        rnd2(A, a, a+1, 16); rnd2(A, a+2, a+3, 17)
        A("v_and_b32 v20, 0xffff0000, v%d\nv_lshlrev_b32 v21, 16, v%d\nv_and_b32 v22, 0xffff0000, v%d\nv_lshlrev_b32 v23, 16, v%d" % (u+1, u+1, u, u))
        for q in range(4): A("v_mul_f32 v%d, s51, v%d" % (20+q, 20+q))
        rnd2(A, 20, 21, 16); rnd2(A, 22, 23, 17)
        for q in range(4): A("v_add_f32 v%d, v%d, v%d" % (a+q, a+q, 20+q))
        A("v_cvt_pk_bf16_f32 v%d, v%d, v%d" % (u, a, a+1))
        A("v_cvt_pk_bf16_f32 v%d, v%d, v%d" % (u+1, a+2, a+3))
        A("ds_write_b64 v14, %s offset:%d" % (vr(u, 2), 512*t))
    A("s_waitcnt lgkmcnt(0)")
    A("s_barrier")
    A("v_and_b32 v12, 3, v0\nv_lshrrev_b32 v13, 2, v0")
    A("v_mul_u32_u24 v14, %d, v12\nv_lshl_add_u32 v14, v13, 4, v14\nv_add_u32 v14, %d, v14" % (YSTR, YS))
    for it in range(4):
        A("ds_read_b128 %s, v14 offset:%d" % (vr(32+4*it), it*1024))
    make_srd(A, 4, 62, 63, WS_YT, 1024*2048*2)
    A("v_lshlrev_b32 v15, 14, v13\nv_lshl_add_u32 v15, v12, 4, v15")
    A("s_lshl_b32 s19, s16, 6")
    for it in range(4):
        A("s_waitcnt lgkmcnt(%d)" % (3-it))
        A("s_add_u32 s50, s19, %d" % (it*64*16384))
        A("buffer_store_dwordx4 %s, v15, s[4:7], s50 offen" % vr(32+4*it))
    ts_dump(A, 5, L+"end")
    A("s_endpgm")
    A("%shelp:" % L)
    A("v_subrev_u32 v0, 256, v0")
    A("s_cmp_lt_u32 s2, 192")
    A("s_cbranch_scc1 %sgemv" % L)
    A("s_load_dwordx2 s[24:25], s[0:1], 0")
    A("s_sub_u32 s56, s2, 192\ns_lshl_b32 s56, s56, 16")
    A("v_lshlrev_b32 v6, 7, v0")
    A("s_waitcnt lgkmcnt(0)")
    make_srd(A, 4, 24, 25, 0, 2048*1024*2)
    A("s_barrier")
    A("buffer_load_dword v20, v6, s[4:7], s56 offen")
    A("s_add_u32 s56, s56, 32768")
    A("s_barrier\ns_barrier\ns_barrier")
    A("buffer_load_dword v21, v6, s[4:7], s56 offen")
    A("s_barrier\ns_barrier")
    A("s_endpgm")
    A("%sgemv:" % L)
    A("s_load_dwordx4 s[36:39], s[0:1], 80")
    A("s_cmp_ge_u32 s2, 96\ns_cselect_b32 s41, 1, 0\ns_mul_i32 s42, s41, 96\ns_sub_u32 s42, s2, s42")
    A("v_lshrrev_b32 v9, 3, v0\ns_movk_i32 s19, 12288\nv_mul_lo_u32 v7, v9, s19")
    A("v_and_b32 v8, 7, v0\nv_lshl_add_u32 v7, v8, 4, v7")
    A("s_mul_i32 s43, s41, %d\ns_lshl_b32 s19, s42, 7\ns_add_u32 s43, s43, s19" % (512*12288))
    A("v_lshlrev_b32 v4, 1, v9\ns_lshl_b32 s19, s41, 10")
    A("s_waitcnt lgkmcnt(0)")
    make_srd(A, 20, 38, 39, 0, 1024*6144*2)
    make_srd(A, 52, 36, 37, 0, 2048)
    for i in range(16):
        A("buffer_load_ushort v%d, v4, s[52:55], s19 offen offset:%d" % (60+i, 64*i))
    A("s_waitcnt vmcnt(0)")
    for i in range(16): A("v_lshlrev_b32 v%d, 16, v%d" % (60+i, 60+i))
    for i in range(16): A("v_mul_f32 v%d, %s, v%d" % (32+i, LOG2E_NEG, 60+i))
    for i in range(16): A("v_exp_f32 v%d, v%d" % (32+i, 32+i))
    for i in range(16): A("v_add_f32 v%d, 1.0, v%d" % (32+i, 32+i))
    for i in range(16): A("v_rcp_f32 v%d, v%d" % (32+i, 32+i))
    for i in range(16): A("v_mul_f32 v%d, v%d, v%d" % (60+i, 60+i, 32+i))
    for i in range(0, 16, 2): rnd2(A, 60+i, 61+i, 32+i)
    for q in range(8): A("v_mov_b32 v%d, 0" % (80+q))
    GVAT = int(os.environ.get("GVAT", "1"))
    WR = 96
    NH = int(os.environ.get("NH", "8"))
    def wl(lo=0, hi=16):
        for i in range(lo, hi):
            A("s_add_u32 s50, s43, %d" % (i*32*12288))
            A("buffer_load_dwordx4 %s, v7, s[20:23], s50 offen" % vr(WR+4*i))
    A("s_barrier")
    wl(0, NH)
    A("s_barrier")
    A("s_barrier")
    A("s_barrier")
    wl(NH, 16)
    for i in range(16):
        w = WR + 4*i
        A("s_waitcnt vmcnt(%d)" % (15-i))
        for q in range(4):
            A("v_lshlrev_b32 v12, 16, v%d\nv_and_b32 v13, 0xffff0000, v%d" % (w+q, w+q))
            A("v_fmac_f32 v%d, v%d, v12\nv_fmac_f32 v%d, v%d, v13" % (80+2*q, 60+i, 81+2*q, 60+i))
    A("s_nop 1")
    for q in range(8):
        A("v_add_f32_dpp v%d, v%d, v%d row_ror:8 row_mask:0xf bank_mask:0xf" % (80+q, 80+q, 80+q))
    A("v_lshrrev_b32 v10, 4, v0\nv_lshlrev_b32 v10, 8, v10\nv_and_b32 v11, 7, v0\nv_lshl_add_u32 v10, v11, 5, v10")
    A("v_and_b32 v11, 15, v0\nv_cmp_gt_u32 vcc, 8, v11\ns_and_saveexec_b64 s[58:59], vcc")
    A("ds_write_b128 v10, v[80:83] offset:%d\nds_write_b128 v10, v[84:87] offset:%d" % (RED0, RED0+16))
    A("s_mov_b64 exec, s[58:59]")
    A("s_waitcnt lgkmcnt(0)")
    A("s_barrier")
    A("s_barrier")
    A("s_cmp_eq_u32 s18, 4")
    A("s_cbranch_scc0 %send" % L)
    A("v_lshlrev_b32 v10, 2, v2")
    for i in range(16):
        A("ds_read_b32 v%d, v10 offset:%d" % (60+i, RED0 + i*256))
    A("s_waitcnt lgkmcnt(0)")
    for i in range(1, 16): A("v_add_f32 v60, v60, v%d" % (60+i))
    make_srd(A, 20, 62, 63, WS_MOD, 2*6144*4)
    A("s_mul_i32 s19, s41, 24576\ns_lshl_b32 s50, s42, 8\ns_add_u32 s19, s19, s50")
    A("buffer_store_dword v60, v10, s[20:23], s19 offen")
    A("%send:" % L)
    A("s_endpgm")
    return name
```

```python
from asmlib import *
import os
EXP = os.environ.get("EXP", "")
GRID = 256
BLOCK = 512
HSTR = 4160
HCH = 4*HSTR
UR0 = 0
URS = 4608
RED0 = UR0 + 4*URS
H0 = RED0 + 4096
LDS = H0 + 4*HCH
VGPR = 240
LOG2E_NEG = "0xbfb8aa3b"
YS = H0
YSTR = 4096 + 16
STR = 272
WS_KFLAG = WS_FLAG + 0xC000

def pk(A, op, d, a, b):
    A("v_pk_%s_f32 %s, %s, %s" % (op, vr(d, 2), vr(a, 2), vr(b, 2)))

def gen_front(A, name="front_kernel"):
    kernel_head(A, name)
    L = "Lfr_"
    A("s_cmp_ge_u32 s2, 256")
    A("s_cbranch_scc1 %send" % L)
    ts_begin(A)
    A("s_load_dwordx4 s[24:27], s[0:1], 8")
    A("s_load_dwordx4 s[28:31], s[0:1], 24")
    A("s_load_dwordx2 s[32:33], s[0:1], 40")
    A("s_load_dwordx4 s[60:63], s[0:1], 104")
    A("v_lshrrev_b32 v1, 6, v0")
    A("v_and_b32 v2, 63, v0")
    A("v_readfirstlane_b32 s18, v1")
    A("s_nop 3")
    A("s_cmp_ge_u32 s18, 4")
    A("s_cbranch_scc1 %shelp" % L)
    A("s_and_b32 s40, s2, 15")
    A("s_lshr_b32 s41, s2, 4")
    A("v_lshrrev_b32 v1, 3, v0")
    A("v_and_b32 v9, 7, v0")
    A("s_lshl_b32 s19, s41, 18\ns_lshl_b32 s20, s40, 7\ns_add_u32 s19, s19, s20")
    A("v_lshlrev_b32 v3, 13, v1\nv_lshl_add_u32 v3, v9, 4, v3\nv_add_u32 v3, s19, v3")
    A("v_subrev_u32 v4, 6144, v3\nv_subrev_u32 v5, 4096, v3\nv_subrev_u32 v6, 2048, v3")
    A("v_lshlrev_b32 v7, 6, v9\ns_lshl_b32 s20, s40, 9\nv_add_u32 v7, s20, v7")
    A("s_and_b32 s16, s2, 7\ns_lshl_b32 s16, s16, 5\ns_lshr_b32 s17, s2, 3\ns_add_u32 s16, s16, s17")
    A("s_lshl_b32 s17, s16, 2\ns_add_u32 s17, s17, s18")
    A("v_lshlrev_b32 v232, 4, v2\nv_subrev_u32 v233, 32, v232\nv_subrev_u32 v234, 16, v232\nv_add_u32 v235, %d, v232" % (62*16))
    A("s_waitcnt lgkmcnt(0)")
    make_srd(A, 4, 24, 25, 0, 2048*1024*2)
    make_srd(A, 8, 26, 27, 0, 2048*1024*2)
    make_srd(A, 12, 28, 29, 0, 1024*8)
    make_srd(A, 20, 62, 63, WS_URT, 1024*2048*2)
    A("s_lshl_b32 s19, s16, 3\ns_add_u32 s32, s32, s19\ns_addc_u32 s33, s33, 0")
    A("s_load_dwordx2 s[48:49], s[32:33], 0")
    A("s_lshl_b32 s42, s17, 12\ns_add_u32 s36, s30, s42\ns_addc_u32 s37, s31, 0\ns_movk_i32 s38, 4096\ns_mov_b32 s39, 0x00020000")
    make_srd(A, 64, 60, 61, 0, 256)
    make_srd(A, 68, 62, 63, WS_KFLAG, 16*128)
    A("s_or_b32 s19, s2, s18")
    A("s_cmp_eq_u32 s19, 0")
    A("s_cbranch_scc0 %snononce" % L)
    A("s_memrealtime s[44:45]")
    A("s_waitcnt lgkmcnt(0)")
    A("s_or_b32 s44, s44, 1")
    A("v_mov_b32 v10, s44\nv_mov_b32 v11, s45\nv_mov_b32 v12, 0")
    A("v_cmp_eq_u32 vcc, 0, v2\ns_and_saveexec_b64 s[58:59], vcc")
    A("buffer_store_dwordx2 v[10:11], v12, s[64:67], 0 offen sc0 sc1")
    A("s_mov_b64 exec, s[58:59]")
    A("s_waitcnt vmcnt(0)")
    A("%snononce:" % L)
    TW, KR, VR = 16, 32, 60
    for q in range(4):
        A("buffer_load_dwordx4 %s, v7, s[12:15], 0 offen offset:%d" % (vr(TW+4*q), 16*q))
    for i in range(3):
        A("buffer_load_dwordx4 %s, v%d, s[4:7], 0 offen" % (vr(KR+4*i), 4+i))
    for i in range(4):
        A("s_movk_i32 s19, %d" % (i*2048))
        A("buffer_load_dwordx4 %s, v3, s[4:7], s19 offen" % vr(KR+12+4*i))
        A("buffer_load_dwordx4 %s, v3, s[8:11], s19 offen" % vr(VR+4*i))
    HS = 192
    for it in range(5):
        if it == 0:
            A("buffer_load_dwordx4 %s, v233, s[36:39], 0 offen" % vr(HS))
            A("buffer_load_dwordx2 %s, v234, s[36:39], 0 offen" % vr(HS+4, 2))
        else:
            A("buffer_load_dwordx4 %s, v235, s[36:39], 0 offen offset:%d" % (vr(HS+8*it), (it-1)*1024))
            A("buffer_load_dwordx2 %s, v235, s[36:39], 0 offen offset:%d" % (vr(HS+8*it+4, 2), (it-1)*1024+16))
    TF = 80; KF = 112
    A("s_waitcnt vmcnt(21)")
    for c in range(8):
        A("v_lshlrev_b32 v%d, 16, v%d\nv_and_b32 v%d, 0xffff0000, v%d" % (TF+c, TW+2*c, TF+8+c, TW+2*c))
        A("v_lshlrev_b32 v%d, 16, v%d\nv_and_b32 v%d, 0xffff0000, v%d" % (TF+16+c, TW+2*c+1, TF+24+c, TW+2*c+1))
    def unpk(i):
        for q in range(4):
            unpack2(A, KF+8*i+2*q, KF+8*i+2*q+1, KR+4*i+q)
    RES = 16
    for j in range(4):
        A("s_waitcnt vmcnt(%d)" % (16 - 2*j))
        if j == 0:
            for i in range(4): unpk(i)
        else:
            unpk(j+3)
    A("s_barrier")
    ts(A, 0)
    for j in range(4):
        for cp in range(4):
            c0 = 2*cp
            a = RES + 8*j + c0
            t = 168 + 4*(cp & 1)
            pk(A, "mul", a, TF+24+c0, KF+8*j+c0)
            rnd2(A, a, a+1, t)
            for tap in range(1, 4):
                pk(A, "mul", t+2, TF+8*(3-tap)+c0, KF+8*(j+tap)+c0)
                rnd2(A, t+2, t+3, t)
                pk(A, "add", a, a, t+2)
                rnd2(A, a, a+1, t)
            unpack2(A, t+2, t+3, VR+4*j+cp)
            pk(A, "mul", a, a, t+2)
    A("v_mul_u32_u24 v8, %d, v9\nv_lshlrev_b32 v10, 3, v1\nv_sub_u32 v8, v8, v10\nv_add_u32 v8, 248, v8" % (8*STR))
    for c in range(8):
        A("v_cvt_pk_bf16_f32 v%d, v%d, v%d" % (48+2*c, RES+24+c, RES+16+c))
        A("v_cvt_pk_bf16_f32 v%d, v%d, v%d" % (49+2*c, RES+8+c, RES+c))
        A("ds_write_b64 v8, %s offset:%d" % (vr(48+2*c, 2), c*STR))
    A("s_waitcnt lgkmcnt(0)")
    A("s_barrier")
    A("v_lshrrev_b32 v8, 4, v0\nv_and_b32 v9, 15, v0")
    A("v_mul_u32_u24 v10, %d, v8\nv_lshl_add_u32 v10, v9, 4, v10" % STR)
    for it in range(4):
        A("ds_read_b128 %s, v10 offset:%d" % (vr(16+4*it), it*16*STR))
    A("v_lshlrev_b32 v11, 12, v8\nv_lshl_add_u32 v11, v9, 4, v11")
    A("s_lshl_b32 s19, s40, 18\ns_lshl_b32 s43, s41, 8\ns_sub_u32 s19, s19, s43\ns_add_u32 s19, s19, 3840")
    for it in range(4):
        A("s_waitcnt lgkmcnt(%d)" % (3-it))
        A("s_add_u32 s43, s19, %d" % (it*16*4096))
        A("buffer_store_dwordx4 %s, v11, s[20:23], s43 offen sc0 sc1" % vr(16+4*it))
    A("v_mov_b32 v12, 0")
    A("buffer_load_dwordx2 v[14:15], v12, s[64:67], 0 offen sc0 sc1")
    ts(A, 1)
    A("s_cmp_lt_u32 s18, 2\ns_cselect_b32 s51, s48, s49\ns_lshl_b32 s57, s51, 16\ns_and_b32 s51, s51, 0xffff0000\ns_bitcmp1_b32 s18, 0\ns_cselect_b32 s51, s51, s57")
    A("s_mul_i32 s19, s18, %d\ns_add_u32 s19, s19, %d" % (HCH, H0))
    A("v_add_u32 v9, s19, v232")
    A("s_waitcnt vmcnt(5)")
    for it in range(5):
        d = HS + 8*it
        if it == 4:
            A("v_cmp_gt_u32 vcc, 4, v2\ns_and_saveexec_b64 s[58:59], vcc")
        off = it*1024
        A("ds_write_b128 v9, %s offset:%d" % (vr(d), off))
        for q in range(4): A("v_alignbit_b32 v%d, v%d, v%d, 16" % (32+q, d+q+1, d+q))
        A("ds_write_b128 v9, v[32:35] offset:%d" % (off + HSTR))
        for q in range(4): A("v_mov_b32 v%d, v%d" % (36+q, d+q+1))
        A("ds_write_b128 v9, v[36:39] offset:%d" % (off + 2*HSTR))
        for q in range(4): A("v_alignbit_b32 v%d, v%d, v%d, 16" % (40+q, d+q+2, d+q+1))
        A("ds_write_b128 v9, v[40:43] offset:%d" % (off + 3*HSTR))
        if it == 4:
            A("s_mov_b64 exec, s[58:59]")
    A("s_waitcnt vmcnt(0) lgkmcnt(0)")
    A("s_barrier")
    A("s_cmp_eq_u32 s18, 0")
    A("s_cbranch_scc0 %sw3" % L)
    A("%snp:" % L)
    A("v_readfirstlane_b32 s44, v14")
    A("v_readfirstlane_b32 s45, v15")
    A("s_cmp_lg_u32 s44, 0")
    A("s_cbranch_scc1 %snok" % L)
    A("buffer_load_dwordx2 v[14:15], v12, s[64:67], 0 offen sc0 sc1")
    A("s_waitcnt vmcnt(0)")
    A("s_branch %snp" % L)
    A("%snok:" % L)
    A("s_lshl_b32 s19, s40, 7\ns_lshl_b32 s43, s41, 3\ns_add_u32 s19, s19, s43")
    A("v_cmp_eq_u32 vcc, 0, v2\ns_and_saveexec_b64 s[58:59], vcc")
    A("buffer_store_dwordx2 v[14:15], v12, s[68:71], s19 offen sc0 sc1")
    A("s_mov_b64 exec, s[58:59]")
    A("s_lshr_b32 s19, s16, 4\ns_lshl_b32 s19, s19, 7")
    A("v_and_b32 v13, 15, v2\nv_lshlrev_b32 v13, 3, v13")
    A("%sgp:" % L)
    A("buffer_load_dwordx2 v[16:17], v13, s[68:71], s19 offen sc0 sc1")
    A("s_waitcnt vmcnt(0)")
    A("v_cmp_ne_u32 vcc, s44, v16")
    A("v_cmp_ne_u32 s[46:47], s45, v17")
    A("s_or_b64 vcc, vcc, s[46:47]")
    A("s_cmp_eq_u64 vcc, 0")
    A("s_cbranch_scc0 %sgp" % L)
    A("%sw3:" % L)
    A("s_barrier")
    ts(A, 2)
    for i in range(4):
        A("s_add_u32 s43, s42, %d" % (i*1024))
        A("buffer_load_dwordx4 %s, v232, s[20:23], s43 offen sc0 sc1" % vr(32+4*i))
    A("v_mov_b32 v12, 0\nv_mov_b32 v13, 0\nv_mov_b32 v14, 0\nv_mov_b32 v15, 0")
    A("s_mul_i32 s19, s18, %d" % URS)
    A("v_add_u32 v11, s19, v232")
    A("v_cmp_gt_u32 vcc, 32, v2\ns_and_saveexec_b64 s[58:59], vcc")
    A("ds_write_b128 v11, v[12:15] offset:%d" % (UR0 + 4096))
    A("s_mov_b64 exec, s[58:59]")
    A("v_and_b32 v10, 15, v2\nv_lshrrev_b32 v1, 4, v2")
    A("v_add_u32 v12, 1, v10\nv_and_b32 v13, 3, v12\nv_lshrrev_b32 v12, 2, v12")
    A("v_mul_u32_u24 v13, %d, v13\nv_lshl_add_u32 v13, v12, 3, v13\nv_lshl_add_u32 v13, v1, 4, v13" % HSTR)
    A("s_mul_i32 s19, s18, %d\ns_add_u32 s19, s19, %d" % (HCH, H0))
    A("v_add_u32 v3, s19, v13")
    A("v_lshlrev_b32 v12, 5, v10\nv_lshlrev_b32 v13, 4, v1\nv_sub_u32 v12, v13, v12")
    A("s_mul_i32 s19, s18, %d\ns_add_u32 s19, s19, %d" % (URS, UR0 + 4064 - 512*7))
    A("v_add_u32 v4, s19, v12")
    ACC = 160
    for i in range(32): A("v_mov_b32 v%d, 0" % (ACC+i))
    for i in range(4):
        A("s_waitcnt vmcnt(%d)" % (3-i))
        A("ds_write_b128 v11, %s offset:%d" % (vr(32+4*i), UR0 + i*1024))
    FA = [32, 96]; FB = [64, 128]
    def rd(r, s):
        ops = []
        for p in range(8):
            ops.append("ds_read_b64 %s, v3 offset:%d" % (vr(FA[s]+4*p, 2), 512*p + 64*r))
            ops.append("ds_read_b64 %s, v3 offset:%d" % (vr(FA[s]+4*p+2, 2), 512*p + 64*r + 8))
            ops.append("ds_read_b128 %s, v4 offset:%d" % (vr(FB[s]+4*p), 512*(7-p) + 64*r))
        return ops
    A("s_waitcnt lgkmcnt(0)")
    ts(A, 3)
    for x in rd(0, 0): A(x)
    for r in range(8):
        s = r & 1
        A("s_waitcnt lgkmcnt(0)")
        nxt = rd(r+1, s ^ 1) if r < 7 else []
        k = 0
        for t in range(8):
            for p in range(t+1):
                q = t - p
                A("v_mfma_f32_16x16x32_bf16 %s, %s, %s, %s" % (vr(ACC+4*t), vr(FA[s]+4*p), vr(FB[s]+4*q), vr(ACC+4*t)))
                if k < len(nxt): A(nxt[k]); k += 1
    ts(A, 4)
    A("v_lshlrev_b32 v12, 5, v10\nv_lshl_add_u32 v12, v1, 3, v12")
    A("s_mul_i32 s19, s18, %d\ns_add_u32 s19, s19, %d" % (URS, UR0 + 4088 - 512*7))
    A("v_sub_u32 v13, s19, v12")
    for t in range(8):
        A("ds_read_b64 %s, v13 offset:%d" % (vr(32+2*t, 2), 512*(7-t)))
    A("s_barrier")
    A("s_mul_i32 s19, s18, %d\ns_add_u32 s19, s19, %d" % (YSTR, YS))
    A("v_add_u32 v14, s19, v12")
    A("s_waitcnt lgkmcnt(0)")
    for t in range(8):
        a = ACC + 4*t
        u = 32 + 2*t
        rnd2(A, a, a+1, 16); rnd2(A, a+2, a+3, 17)
        A("v_and_b32 v20, 0xffff0000, v%d\nv_lshlrev_b32 v21, 16, v%d\nv_and_b32 v22, 0xffff0000, v%d\nv_lshlrev_b32 v23, 16, v%d" % (u+1, u+1, u, u))
        for q in range(4): A("v_mul_f32 v%d, s51, v%d" % (20+q, 20+q))
        rnd2(A, 20, 21, 16); rnd2(A, 22, 23, 17)
        for q in range(4): A("v_add_f32 v%d, v%d, v%d" % (a+q, a+q, 20+q))
        A("v_cvt_pk_bf16_f32 v%d, v%d, v%d" % (u, a, a+1))
        A("v_cvt_pk_bf16_f32 v%d, v%d, v%d" % (u+1, a+2, a+3))
        A("ds_write_b64 v14, %s offset:%d" % (vr(u, 2), 512*t))
    A("s_waitcnt lgkmcnt(0)")
    A("s_barrier")
    A("v_and_b32 v12, 3, v0\nv_lshrrev_b32 v13, 2, v0")
    A("v_mul_u32_u24 v14, %d, v12\nv_lshl_add_u32 v14, v13, 4, v14\nv_add_u32 v14, %d, v14" % (YSTR, YS))
    for it in range(4):
        A("ds_read_b128 %s, v14 offset:%d" % (vr(32+4*it), it*1024))
    make_srd(A, 4, 62, 63, WS_YT, 1024*2048*2)
    A("v_lshlrev_b32 v15, 14, v13\nv_lshl_add_u32 v15, v12, 4, v15")
    A("s_lshl_b32 s19, s16, 6")
    for it in range(4):
        A("s_waitcnt lgkmcnt(%d)" % (3-it))
        A("s_add_u32 s50, s19, %d" % (it*64*16384))
        A("buffer_store_dwordx4 %s, v15, s[4:7], s50 offen" % vr(32+4*it))
    ts_dump(A, 5, L+"end")
    A("s_endpgm")
    A("%shelp:" % L)
    A("v_subrev_u32 v0, 256, v0")
    A("s_cmp_lt_u32 s2, 192")
    A("s_cbranch_scc1 %sgemv" % L)
    A("s_load_dwordx2 s[24:25], s[0:1], 0")
    A("s_sub_u32 s56, s2, 192\ns_lshl_b32 s56, s56, 16")
    A("v_lshlrev_b32 v6, 7, v0")
    A("s_waitcnt lgkmcnt(0)")
    make_srd(A, 4, 24, 25, 0, 2048*1024*2)
    A("s_barrier")
    if os.environ.get("CPF", "0") == "1":
        A("s_getpc_b64 s[30:31]")
        A("%spc:" % L)
        A("s_add_u32 s30, s30, ln_kernel-%spc" % L)
        A("s_addc_u32 s31, s31, 0")
        A("v_cmp_gt_u32 vcc, 192, v0\ns_and_saveexec_b64 s[58:59], vcc")
        A("global_load_dword v22, v6, s[30:31]")
        A("s_mov_b64 exec, s[58:59]")
    A("buffer_load_dword v20, v6, s[4:7], s56 offen")
    A("s_add_u32 s56, s56, 32768")
    A("s_barrier\ns_barrier\ns_barrier")
    A("buffer_load_dword v21, v6, s[4:7], s56 offen")
    A("s_barrier\ns_barrier")
    A("s_endpgm")
    A("%sgemv:" % L)
    A("s_load_dwordx4 s[36:39], s[0:1], 80")
    A("s_cmp_ge_u32 s2, 96\ns_cselect_b32 s41, 1, 0\ns_mul_i32 s42, s41, 96\ns_sub_u32 s42, s2, s42")
    A("v_lshrrev_b32 v9, 3, v0\ns_movk_i32 s19, 12288\nv_mul_lo_u32 v7, v9, s19")
    A("v_and_b32 v8, 7, v0\nv_lshl_add_u32 v7, v8, 4, v7")
    A("s_mul_i32 s43, s41, %d\ns_lshl_b32 s19, s42, 7\ns_add_u32 s43, s43, s19" % (512*12288))
    A("v_lshlrev_b32 v4, 1, v9\ns_lshl_b32 s19, s41, 10")
    A("s_waitcnt lgkmcnt(0)")
    make_srd(A, 20, 38, 39, 0, 1024*6144*2)
    make_srd(A, 52, 36, 37, 0, 2048)
    for i in range(16):
        A("buffer_load_ushort v%d, v4, s[52:55], s19 offen offset:%d" % (60+i, 64*i))
    A("s_waitcnt vmcnt(0)")
    for i in range(16): A("v_lshlrev_b32 v%d, 16, v%d" % (60+i, 60+i))
    for i in range(16): A("v_mul_f32 v%d, %s, v%d" % (32+i, LOG2E_NEG, 60+i))
    for i in range(16): A("v_exp_f32 v%d, v%d" % (32+i, 32+i))
    for i in range(16): A("v_add_f32 v%d, 1.0, v%d" % (32+i, 32+i))
    for i in range(16): A("v_rcp_f32 v%d, v%d" % (32+i, 32+i))
    for i in range(16): A("v_mul_f32 v%d, v%d, v%d" % (60+i, 60+i, 32+i))
    for i in range(0, 16, 2): rnd2(A, 60+i, 61+i, 32+i)
    for q in range(8): A("v_mov_b32 v%d, 0" % (80+q))
    GVAT = int(os.environ.get("GVAT", "1"))
    WR = 96
    NH = int(os.environ.get("NH", "8"))
    def wl(lo=0, hi=16):
        for i in range(lo, hi):
            A("s_add_u32 s50, s43, %d" % (i*32*12288))
            A("buffer_load_dwordx4 %s, v7, s[20:23], s50 offen" % vr(WR+4*i))
    A("s_barrier")
    wl(0, NH)
    A("s_barrier")
    A("s_barrier")
    A("s_barrier")
    wl(NH, 16)
    for i in range(16):
        w = WR + 4*i
        A("s_waitcnt vmcnt(%d)" % (15-i))
        for q in range(4):
            A("v_lshlrev_b32 v12, 16, v%d\nv_and_b32 v13, 0xffff0000, v%d" % (w+q, w+q))
            A("v_fmac_f32 v%d, v%d, v12\nv_fmac_f32 v%d, v%d, v13" % (80+2*q, 60+i, 81+2*q, 60+i))
    A("s_nop 1")
    for q in range(8):
        A("v_add_f32_dpp v%d, v%d, v%d row_ror:8 row_mask:0xf bank_mask:0xf" % (80+q, 80+q, 80+q))
    A("v_lshrrev_b32 v10, 4, v0\nv_lshlrev_b32 v10, 8, v10\nv_and_b32 v11, 7, v0\nv_lshl_add_u32 v10, v11, 5, v10")
    A("v_and_b32 v11, 15, v0\nv_cmp_gt_u32 vcc, 8, v11\ns_and_saveexec_b64 s[58:59], vcc")
    A("ds_write_b128 v10, v[80:83] offset:%d\nds_write_b128 v10, v[84:87] offset:%d" % (RED0, RED0+16))
    A("s_mov_b64 exec, s[58:59]")
    A("s_waitcnt lgkmcnt(0)")
    A("s_barrier")
    A("s_barrier")
    A("s_cmp_eq_u32 s18, 4")
    A("s_cbranch_scc0 %send" % L)
    A("v_lshlrev_b32 v10, 2, v2")
    for i in range(16):
        A("ds_read_b32 v%d, v10 offset:%d" % (60+i, RED0 + i*256))
    A("s_waitcnt lgkmcnt(0)")
    for i in range(1, 16): A("v_add_f32 v60, v60, v%d" % (60+i))
    make_srd(A, 20, 62, 63, WS_MOD, 2*6144*4)
    A("s_mul_i32 s19, s41, 24576\ns_lshl_b32 s50, s42, 8\ns_add_u32 s19, s19, s50")
    A("buffer_store_dword v60, v10, s[20:23], s19 offen")
    A("%send:" % L)
    A("s_endpgm")
    return name
```

```python
import sys, re
src, dst = sys.argv[1], sys.argv[2]
s = open(src).read()
names = re.findall(r"; @launch kernel=(\w+)", s)
out = s
for k, n in enumerate(names):
    stamp = """%s:
    s_cmp_lg_u32 s2, 7
    s_cbranch_scc1 Ltl_skip%d
    s_load_dwordx2 s[96:97], s[0:1], 112
    s_memrealtime s[98:99]
    s_waitcnt lgkmcnt(0)
    s_add_u32 s92, s96, 0x20000
    s_addc_u32 s93, s97, 0
    s_mov_b32 s94, 256
    s_mov_b32 s95, 0x00020000
    v_mov_b32 v1, s98
    v_mov_b32 v2, %d
    v_cmp_eq_u32 vcc, 0, v0
    s_and_saveexec_b64 s[90:91], vcc
    buffer_store_dword v1, v2, s[92:95], 0 offen
    s_waitcnt vmcnt(0)
    s_mov_b64 exec, s[90:91]
Ltl_skip%d:
""" % (n, k, 4*k, k)
    out = out.replace("\n%s:\n" % n, "\n" + stamp, 1)
fin = """Lg2_fin:
    s_cmp_lg_u32 s2, 15
    s_cbranch_scc1 Ltl_fin
    s_waitcnt vmcnt(0)
    s_load_dwordx4 s[92:95], s[0:1], 104
    s_memrealtime s[98:99]
    s_waitcnt lgkmcnt(0)
    s_add_u32 s84, s94, 0x20000
    s_addc_u32 s85, s95, 0
    s_mov_b32 s86, 256
    s_mov_b32 s87, 0x00020000
    s_mov_b32 s94, 256
    s_mov_b32 s95, 0x00020000
    v_and_b32 v1, 63, v0
    v_lshlrev_b32 v1, 2, v1
    buffer_load_dword v2, v1, s[84:87], 0 offen sc0 sc1
    s_waitcnt vmcnt(0)
    v_mov_b32 v3, s98
    v_cmp_eq_u32 vcc, %d, v1
    s_nop 1
    v_cndmask_b32 v2, v2, v3, vcc
    v_cmp_gt_u32 vcc, 64, v0
    s_and_saveexec_b64 s[90:91], vcc
    buffer_store_dword v2, v1, s[92:95], 0 offen
    s_mov_b64 exec, s[90:91]
Ltl_fin:
""" % (4*len(names))
out = out.replace("Lg2_fin:\n", fin, 1)
open(dst, "w").write(out)
```
